```python
import torch

def _softmax(x, axis=-1):
    return torch.softmax(x, dim=axis)
def _gelu(x):
    return torch.nn.functional.gelu(x, approximate="tanh")
def _silu(x):
    return torch.nn.functional.silu(x)
def _sigmoid(x):
    return torch.sigmoid(x)
def _layernorm(x, axis=-1, eps=1e-5):
    m = x.mean(dim=axis, keepdim=True)
    v = x.var(dim=axis, keepdim=True, unbiased=False)
    return (x - m) / torch.sqrt(v + eps)
def _scatter_add(tgt, idx, src, axis=0):
    return tgt.clone().index_add_(axis, idx, src)
def _segment_sum(src, seg, n):
    out = torch.zeros((n,) + src.shape[1:], dtype=src.dtype)
    return out.index_add_(0, seg, src)
def _pad(x, pw):
    flat = tuple(v for pair in reversed(pw) for v in pair)
    return torch.nn.functional.pad(x, flat)

kernel_name = 'gated_mix__linear_attn_block__ssm_conv_s4d__prompt'

def setup_inputs():

    _w = (lambda a: (lambda t: t.to(torch.bfloat16) if t.is_floating_point() else t)(torch.as_tensor(a)))
    def _A_setup():
        B, S, D = 1, 2048, 640
        return {
            "x": _w((lambda *s: torch.randn(*s, dtype=torch.bfloat16) * 0.05)(B, S, D)),
            "wqkv": _w((lambda *s: torch.randn(*s, dtype=torch.bfloat16) * 0.8)(D, 3 * D)),
            "wo": _w((lambda *s: torch.randn(*s, dtype=torch.bfloat16) * 0.05)(D, D)),
        }
    _A_in = _A_setup()

    def _B_setup():
        Bsz, L, D, N = 1, 2048, 640, 128
        return {
            "u": _w((lambda *s: torch.randn(*s, dtype=torch.bfloat16) * 0.05)(Bsz, L, D)),
            "log_A_real": _w((lambda *s: torch.randn(*s, dtype=torch.bfloat16) * 6.4)(D, N) * 0.5),
            "A_imag": _w((lambda *s: torch.randn(*s, dtype=torch.bfloat16) * 0.1)(D, N) * 3.14),
            "C_real": _w((lambda *s: torch.randn(*s, dtype=torch.bfloat16) * 0.2)(D, N) / N ** 0.5),
            "C_imag": _w((lambda *s: torch.randn(*s, dtype=torch.bfloat16) * 0.2)(D, N) / N ** 0.5),
            "log_dt": _w((lambda *s: torch.randn(*s, dtype=torch.bfloat16) * 0.1)(D) * 0.5 - 4.0),
            "D_skip": _w((lambda *s: torch.randn(*s, dtype=torch.bfloat16) * 0.1)(D)),
        }
    _B_in = _B_setup()

    return {
        "A_x": _A_in["x"],
        "A_wqkv": _A_in["wqkv"],
        "A_wo": _A_in["wo"],
        "B_u": _B_in["u"],
        "B_log_A_real": _B_in["log_A_real"],
        "B_A_imag": _B_in["A_imag"],
        "B_C_real": _B_in["C_real"],
        "B_C_imag": _B_in["C_imag"],
        "B_log_dt": _B_in["log_dt"],
        "B_D_skip": _B_in["D_skip"],
        "gate_w": _w((lambda *s: torch.randn(*s, dtype=torch.bfloat16) * 0.05)(640) * 16.0),
    }

def reference(A_x, A_wqkv, A_wo, B_u, B_log_A_real, B_A_imag, B_C_real, B_C_imag, B_log_dt, B_D_skip, gate_w):
    def _A_ref(x, wqkv, wo):
        B, S, D = x.shape
        H = 32; Dh = D // H
        qkv = (lambda x, *d: x.permute(*d))((x @ wqkv).reshape(B, S, 3, H, Dh), 2, 0, 3, 1, 4)
        q, k, v = qkv[0], qkv[1], qkv[2]
        phi = lambda t: torch.where(t > 0, t + 1, torch.exp(t)) + 1e-6
        pq, pk = phi(q), phi(k)
        kv = torch.einsum("bhsd,bhse->bhde", pk, v)
        z = torch.einsum("bhsd->bhd", pk)
        num = torch.einsum("bhqd,bhde->bhqe", pq, kv)
        den = torch.einsum("bhqd,bhd->bhq", pq, z)[..., None] + 1e-6
        o = num / den
        return (lambda x, *d: x.permute(*d))(o, 0, 2, 1, 3).reshape(B, S, D) @ wo

    def _B_ref(u, log_A_real, A_imag, C_real, C_imag, log_dt, D_skip):
        L = u.shape[1]
        dt = torch.exp(log_dt)
        A = -torch.exp(log_A_real) + 1j * A_imag
        C = (C_real + 1j * C_imag) * dt[:, None]
        pos = (lambda x, dt: x.to(dt))(torch.arange(L), log_dt.dtype)
        P = torch.exp((A * dt[:, None])[:, :, None] * pos[None, None, :])
        K = 2.0 * torch.einsum("dn,dnl->dl", C, P).real
        L2 = 2 * L
        u_t = (lambda x, *d: x.permute(*d))(u, 0, 2, 1)
        Kf = (lambda x, *a, **k: torch.fft.rfft(x.float(), *a, **k))(K, L2)
        Uf = (lambda x, *a, **k: torch.fft.rfft(x.float(), *a, **k))(u_t, L2)
        y = (lambda x, *a, **k: torch.fft.irfft(x, *a, **k).to(torch.bfloat16))(Uf * Kf[None, :, :], L2)[:, :, :L]
        y = (lambda x, *d: x.permute(*d))(y, 0, 2, 1)
        return y + u * D_skip[None, None, :]

    x = A_x
    g = _sigmoid((x * gate_w).sum(-1, keepdims=True))
    a = _A_ref(x, A_wqkv, A_wo)
    b = _B_ref(x, B_log_A_real, B_A_imag, B_C_real, B_C_imag, B_log_dt, B_D_skip)
    return g * a + (1 - g) * b
```

```python
NAME = "gated_mix__linear_attn_block__ssm_conv_s4d__prompt"


class Asm:
    def __init__(self):
        self.lines = []
        self.nlabel = 0

    def __call__(self, s):
        for ln in s.split("\n"):
            ln = ln.strip()
            if ln:
                self.lines.append(ln if ln.endswith(":") else "    " + ln)

    def label(self, stem):
        self.nlabel += 1
        return f"L_{stem}_{self.nlabel}"

    def text(self):
        return "\n".join(self.lines) + "\n"


def v(i, n=1):
    return f"v{i}" if n == 1 else f"v[{i}:{i+n-1}]"


def a(i, n=1):
    return f"a{i}" if n == 1 else f"a[{i}:{i+n-1}]"


def s(i, n=1):
    return f"s{i}" if n == 1 else f"s[{i}:{i+n-1}]"


def wrap(body, grid, block, lds, vgpr=256, agpr=0, header=""):
    k = NAME + "_kernel"
    acc = (vgpr + 3) // 4 * 4
    return f"""{header}; @launch grid=({grid},1,1) block=({block},1,1) lds={lds}
.amdgcn_target "amdgcn-amd-amdhsa--gfx950"
.text
.globl {k}
.p2align 8
.type {k},@function
{k}:
{body}
.section .rodata,"a"
.p2align 6
.amdhsa_kernel {k}
  .amdhsa_next_free_vgpr {acc + agpr if agpr else vgpr}
  .amdhsa_next_free_sgpr 102
  .amdhsa_accum_offset {acc}
  .amdhsa_group_segment_fixed_size 0
  .amdhsa_kernarg_size 112
  .amdhsa_user_sgpr_count 2
  .amdhsa_user_sgpr_kernarg_segment_ptr 1
  .amdhsa_system_sgpr_workgroup_id_x 1
  .amdhsa_float_denorm_mode_32 3
.end_amdhsa_kernel
"""


import ast


class LaneExpr:
    def __init__(self, A, temps, env=None):
        self.A = A
        self.pool = list(temps)
        self.tset = set(temps)
        self.env = dict(env or {})

    def _new(self):
        return self.pool.pop()

    def _free(self, *ops):
        for o in ops:
            if isinstance(o, str) and o in self.tset and o not in self.pool:
                self.pool.append(o)

    @staticmethod
    def _isv(o):
        return isinstance(o, str) and o[0] == "v"

    def _tov(self, o):
        if self._isv(o):
            return o
        t = self._new()
        self.A(f"v_mov_b32 {t}, {o}")
        return t

    def _bin(self, op, x, y, dst):
        if isinstance(x, int) and isinstance(y, int):
            return {"+": x + y, "-": x - y, "*": x * y, "&": x & y, "|": x | y, "^": x ^ y, ">>": x >> y, "<<": x << y}[op]
        comm = {"+": "v_add_u32", "*": "v_mul_u32_u24", "&": "v_and_b32", "|": "v_or_b32", "^": "v_xor_b32"}
        if op == "*":
            for p, q in ((x, y), (y, x)):
                if isinstance(q, int) and q > 0 and q & (q - 1) == 0:
                    return self._bin("<<", p, q.bit_length() - 1, dst)
        if op in comm:
            if not self._isv(y):
                x, y = y, x
            y = self._tov(y)
            ins, s0, s1 = comm[op], x, y
        elif op == "-":
            if self._isv(y):
                ins, s0, s1 = "v_sub_u32", x, y
            else:
                x = self._tov(x)
                ins, s0, s1 = "v_subrev_u32", y, x
        else:
            x = self._tov(x)
            ins, s0, s1 = ("v_ashrrev_i32" if op == ">>" else "v_lshlrev_b32"), y, x
        self._free(x, y)
        d = dst or self._new()
        self.A(f"{ins} {d}, {s0}, {s1}")
        return d

    def _ev(self, n, dst=None):
        ops = {ast.Add: "+", ast.Sub: "-", ast.Mult: "*", ast.BitAnd: "&", ast.BitOr: "|", ast.BitXor: "^", ast.RShift: ">>", ast.LShift: "<<"}
        if isinstance(n, ast.Constant):
            return n.value
        if isinstance(n, ast.UnaryOp):
            return -self._ev(n.operand)
        if isinstance(n, ast.Name):
            return self.env.get(n.id, n.id)
        if isinstance(n, ast.BinOp):
            x = self._ev(n.left)
            y = self._ev(n.right)
            return self._bin(ops[type(n.op)], x, y, dst)
        if isinstance(n, ast.IfExp):
            t = self._tov(self._ev(n.body))
            f = self._tov(self._ev(n.orelse))
            c = n.test
            x = self._ev(c.left)
            y = self._ev(c.comparators[0])
            nm = {ast.Lt: "lt", ast.LtE: "le", ast.Gt: "gt", ast.GtE: "ge", ast.Eq: "eq", ast.NotEq: "ne"}[type(c.ops[0])]
            if not self._isv(y):
                x, y = y, self._tov(x)
                nm = {"lt": "gt", "le": "ge", "gt": "lt", "ge": "le"}.get(nm, nm)
            self.A(f"v_cmp_{nm}_i32 vcc, {x}, {y}")
            self._free(x, y, t, f)
            d = dst or self._new()
            self.A(f"v_cndmask_b32 {d}, {f}, {t}, vcc")
            return d
        raise ValueError(ast.dump(n))

    def __call__(self, dst, expr, name=None):
        if isinstance(dst, int):
            dst = f"v{dst}"
        r = self._ev(ast.parse(expr, mode="eval").body, dst)
        if r != dst:
            self.A(f"v_mov_b32 {dst}, {r}")
            self._free(r)
        if name:
            self.env[name] = dst
        return dst
```

```python
import re

TRANS = ("v_exp_", "v_log_", "v_rcp_", "v_rsq_", "v_sqrt_", "v_sin_", "v_cos_")


def regs(tok):
    tok = tok.strip().lstrip("-").strip("|")
    m = re.fullmatch(r"([vsa])(\d+)", tok)
    if m:
        return {(m[1], int(m[2]))}
    m = re.fullmatch(r"([vsa])\[(\d+):(\d+)\]", tok)
    if m:
        return {(m[1], i) for i in range(int(m[2]), int(m[3]) + 1)}
    if tok in ("vcc", "m0", "exec"):
        return {(tok, 0)}
    return set()


class Ins:
    def __init__(self, line):
        t = line.strip().split(";")[0].strip()
        self.mn, _, rest = t.partition(" ")
        parts = [p.strip() for p in re.split(r",(?![^\[]*\])", rest)] if rest else []
        self.mods = ""
        if parts:
            last = parts[-1].split(" ", 1)
            parts[-1] = last[0]
            self.mods = last[1] if len(last) > 1 else ""
        ops = [regs(p) for p in parts]
        mn = self.mn
        self.mfma = mn.startswith("v_mfma")
        self.valu = mn.startswith("v_") and not self.mfma
        self.trans = mn.startswith(TRANS)
        self.salu = mn.startswith("s_")
        self.vmem = mn.startswith(("buffer_", "global_"))
        self.ds = mn.startswith("ds_")
        self.dpp = "dpp" in mn or mn.startswith("v_permlane")
        self.rfl = mn.startswith(("v_readfirstlane", "v_readlane"))
        self.dma = self.vmem and " lds" in " " + self.mods
        self.w, self.r, self.c, self.ab, self.sdata = set(), set(), set(), set(), set()
        U = lambda l: set().union(*l) if l else set()
        if self.mfma:
            self.w, self.ab, self.c = ops[0], ops[1] | ops[2], ops[3]
            self.r = self.ab | self.c
        elif self.valu:
            self.w, self.r = ops[0], U(ops[1:])
            if mn.startswith(("v_swap", "v_permlane")):
                self.w = self.r = ops[0] | ops[1]
            if "dpp" in mn or mn.startswith(("v_fmac", "v_dot2c", "v_writelane")):
                self.r = self.r | ops[0]
        elif self.vmem:
            if self.dma:
                self.r = U(ops) | {("m0", 0)}
            elif "_load" in mn:
                self.w, self.r = ops[0], U(ops[1:])
            else:
                self.r = U(ops)
                if "x4" in mn or "x3" in mn:
                    self.sdata = ops[0] if mn.startswith("buffer") else ops[1]
        elif self.ds:
            if "read" in mn:
                self.w, self.r = ops[0], U(ops[1:])
            else:
                self.r = U(ops)
        elif self.salu and ops and not mn.startswith(("s_cmp", "s_cbranch", "s_branch", "s_waitcnt", "s_nop", "s_sleep", "s_setprio")):
            self.w, self.r = ops[0], U(ops[1:])
        self.states = int(parts[0]) + 1 if mn == "s_nop" else 1
        self.target = parts[0] if mn.startswith(("s_cbranch", "s_branch")) else None


def need(p, c):
    n = 0
    vw = {x for x in p.w if x[0] in "va" and x[0] != "vcc"}
    sw = p.w - vw
    if p.valu:
        if c.mfma and vw & c.r: n = max(n, 2)
        if c.valu and p.trans and vw & c.r: n = max(n, 1)
        if c.dpp and vw & c.r: n = max(n, 2)
        if c.rfl and vw & c.r: n = max(n, 1)
        if c.valu and sw & c.r: n = max(n, 4 if c.rfl else 2)
        if c.vmem and sw & c.r: n = max(n, 5)
    if p.mfma:
        if c.mfma:
            if p.w & c.ab: n = max(n, 8)
            if p.w & c.c and p.w != c.c: n = max(n, 6)
            if p.w & c.w and not (p.w & c.c): n = max(n, 8)
        elif c.valu or c.vmem or c.ds:
            if p.w & (c.r | c.w): n = max(n, 8)
            if c.valu and p.c & c.w: n = max(n, 3)
    if p.salu and c.dma and ("m0", 0) in p.w: n = max(n, 1)
    if p.sdata and p.sdata & c.w: n = max(n, 2)
    return n


def fix(lines):
    out, hists, pending = [], [[]], {}
    for ln in lines:
        t = ln.strip()
        if t.endswith(":"):
            hists += pending.pop(t[:-1], [])
            out.append(ln)
            continue
        if t.startswith((";", ".")):
            out.append(ln)
            continue
        c = Ins(ln)
        pad = 0
        for h in hists:
            d = 0
            for p in reversed(h):
                pad = max(pad, need(p, c) - d)
                d += p.states
                if d >= 8: break
        new = []
        if pad > 0:
            out.append(f"    s_nop {pad - 1}")
            new.append(Ins(f"s_nop {pad - 1}"))
        out.append(ln)
        new.append(c)
        hists = [(h + new)[-9:] for h in hists]
        uniq = []
        for h in hists:
            if not any(len(h) == len(u) and all(x is y for x, y in zip(h, u)) for u in uniq): uniq.append(h)
        hists = uniq
        if c.target:
            pending.setdefault(c.target, []).extend([list(h) for h in hists])
        if c.mn in ("s_branch", "s_endpgm"):
            hists = [[]]
    return out
```

```python
from k_common import *


def attn_ids(C):
    C.A(f"""s_lshr_b32 {RB}, {XCD}, 1
    s_lshl_b32 {RB}, {RB}, 2
    s_and_b32 s63, {IDX}, 3
    s_add_u32 {RB}, {RB}, s63
    s_and_b32 {QUAD}, {XCD}, 1
    s_lshl_b32 {QUAD}, {QUAD}, 2
    s_lshr_b32 s63, {IDX}, 2
    s_add_u32 {QUAD}, {QUAD}, s63
    s_lshl_b32 {LID}, {RB}, 3
    s_add_u32 {LID}, {LID}, {QUAD}
    s_lshl_b32 {FLAGO}, {LID}, 3
    s_add_u32 {FLAGO}, {FLAGO}, {WAVE}
    s_lshl_b32 {FLAGO}, {FLAGO}, 7
    s_mov_b32 s10, {LOG2E}
    s_mov_b32 s11, {EPS}
    s_cmp_ge_u32 {WAVE}, 4
    s_cbranch_scc1 L_loader""")


def compute(C):
    A, R = C.A, "kv"
    VZ, VONE, VD, VH0, VNE = "v1", "v2", "v3", "v4", "v5"
    XA, WM, WT = 6, 10, 14
    SCA, SCB, L16, PF1, OA = 18, 19, 20, 21, 22
    EP, EPM, SEL, MSK, FR, ACC = 28, 32, 36, 44, 84, 176
    X = LaneExpr(A, [f"v{i}" for i in range(156, 172)])
    A(f"v_mov_b32 {VZ}, 0\nv_mov_b32 {VONE}, 1")
    X(172, "v0 * 1280"); X(173, "v0 * 3840")
    C.srds()
    C.clear_flag(VZ)
    npf = C.o.get("npa", 1)
    A(f"s_lshl_b32 s67, {IDX}, 2\ns_add_u32 s67, s67, {WAVE}\ns_add_u32 s67, s67, 18")
    for i in range(npf):
        C.pf_kv("s67", "v172", "v173", VD)
        if i + 1 < npf: A("s_add_u32 s67, s67, 64")
    C.stamp(R, 1, "pf")
    A(f"s_lshr_b32 s68, {WAVE}, 1\ns_and_b32 s69, {WAVE}, 1")
    X.env.update(wr="s68", wp="s69")
    X(174, "v0 & 15", "n"); X(175, "v0 >> 4", "g")
    for ks in range(2):
        X(XA + ks, f"(wr * 64 + n) * 128 + ((({4 * ks} + g) ^ (n >> 1)) * 16)")
        X(XA + 2 + ks, f"v{XA + ks} + {2 * SLOT}")
    for hh in range(2):
        X(172, f"(g * 8 + (({hh} ^ (g & 1)) * 4) + (n >> 2)) * 160 + wp * 80 + 16384")
        X(WM + hh, "v172 + (n & 3) * 8")
        X(WT + hh, "v172 + 32 + (n & 1) * 40 + ((n >> 1) & 1) * 10256")
        X(WM + 2 + hh, f"v{WM + hh} + {2 * SLOT}")
        X(WT + 2 + hh, f"v{WT + hh} + {2 * SLOT}")
    X(L16, "v0 * 16")
    X(PF1, f"((n * 8 + {QUAD}) * 8 + {WAVE}) * 128")
    C.wo_addr(X, OA)
    X(172, "wp * 2 + ((n >> 2) & 1)", "h")
    X(173, "((8 + h) * 64 + (n & 3) * 4 + h) if n < 8 else ((4 + h) * 64 + h * 4 + (n & 3))")
    X(SCA, f"{L_OP} + (((wp * 128 + v0) if wr == 0 else (v173 + g * 16)) * 16)")
    X(172, "wp * 2 + (g & 1)", "h")
    X(173, f"((4 + h) * 64 + h * 20 + (n & 3)) if (n >> 2) == g else (768 + (v0 >> 1))")
    X(173, "((8 + h) * 64 + n * 4 + h * 17) if n < 4 else v173")
    X(173, "(h * 80 + n) if g < 2 else v173")
    X(SCB, f"{L_OP} + (((wp * 128 + 64 + v0) * 16) if wr == 0 else (v173 * 16 + 8))")
    A(f"v_mov_b32 {VNE}, {NEPSL}")
    X(EPM, f"{EPS} if n < 8 else 0")
    for i in range(4):
        A(f"v_mov_b32 v{EP + i}, s11")
        if i: A(f"v_mov_b32 v{EPM + i}, v{EPM}")
    X(172, "(16256 << ((n & 1) * 16)) if (n >> 2) == g else 0")
    X(SEL + 2, "v172 if (n & 2) == 0 else 0"); X(SEL + 3, "v172 if (n & 2) != 0 else 0")
    A(f"v_mov_b32 v{SEL + 4}, v{SEL + 2}\nv_mov_b32 v{SEL + 5}, v{SEL + 3}")
    for i in (0, 1, 6, 7): A(f"v_mov_b32 v{SEL + i}, 0")
    X(172, f"{0x3F803F80} if n < 4 else 0"); X(173, f"{0x3F803F80} if (n >> 2) == 1 else 0")
    for gm in range(2):
        for i in range(20):
            A(f"v_mov_b32 v{MSK + 20 * gm + i}, {'v172' if 12 <= i < 16 else 'v173' if i >= 16 else 0}")
    X(172, f"v{L16} + {WAVE} * 3072 + {L_OP}")
    for i in range(3): A(f"ds_write_b128 v172, {v(MSK, 4)} offset:{1024 * i}")
    A(f"s_waitcnt vmcnt({npf}) lgkmcnt(0)")
    C.stamp(R, 2, "rdy")

    def reads(st):
        c, ks = st >> 1, st & 1
        hi, off, f = ((c & 3) >> 1) * 2, (c & 1) * SLOT, FR + 36 * (st & 1)
        r = [f"ds_read_b128 {v(f + 4 * rt, 4)}, v{XA + hi + ks} offset:{off + 2048 * rt}" for rt in range(4)]
        for ct in range(5):
            for hh in range(2):
                a, o = (WM, (0, 40, 10256, 10296)[ct]) if ct < 4 else (WT, 0)
                r.append(f"ds_read_b64_tr_b16 {v(f + 16 + 4 * ct + 2 * hh, 2)}, v{a + hi + hh} offset:{off + 5120 * ks + o}")
        return r

    def mfmas(st):
        f, m = FR + 36 * (st & 1), []
        for ct in (0, 1, 4, 2, 3):
            for rt in range(4):
                d = v(ACC + 20 * rt + 4 * ct, 4)
                c = d if st else (v(EP, 4) if ct < 2 else v(EPM, 4) if ct == 4 else "0")
                m.append(f"{MF} {d}, {v(f + 4 * rt, 4)}, {v(f + 16 + 4 * ct, 4)}, {c}")
        return m

    A("s_barrier")
    C.stamp(R, 3, "B0")
    for r in reads(0): A(r)
    C.h0_add(VH0, VONE)
    A("s_waitcnt lgkmcnt(0)")
    for c in range(10):
        m = mfmas(2 * c)
        interleave(A, m[:-1], reads(2 * c + 1), per=2)
        A("s_waitcnt lgkmcnt(0)\ns_barrier")
        A(m[-1])
        if c == 4: C.stamp(R, 4, "B5")
        if c == 7: C.h0_load(VZ, VH0)
        m = mfmas(2 * c + 1)
        interleave(A, m[:-1], reads(2 * c + 2) if c < 9 else [], per=2)
        A("s_waitcnt lgkmcnt(0)")
        A(m[-1])
    C.stamp(R, 5, "kvend")
    acc = lambda rt, ct: ACC + 20 * rt + 4 * ct
    tmp = list(range(156, 164))
    C.phi([acc(rt, ct) + i for ct in (0, 1) for rt in range(4) for i in range(4)], tmp, VNE)
    A("s_mov_b32 exec_lo, 0x00ff00ff\ns_mov_b32 exec_hi, 0x00ff00ff")
    C.phi([acc(rt, 4) + i for rt in range(4) for i in range(4)], tmp, VNE)
    A("s_mov_b64 exec, -1")
    PK, T = FR, FR + 40
    for gm in range(2):
        for ct in (4, 0, 1, 2, 3):
            for j in range(4):
                s0 = acc(2 * gm + (j >> 1), ct) + 2 * (j & 1)
                C.cvt(PK + 20 * gm + 4 * ct + j, s0, s0 + 1)
        for k, (ctl, bm) in enumerate((("quad_perm:[0,1,2,3]", 1), ("quad_perm:[0,1,2,3]", 2), ("row_ror:8", 12),
                                       ("quad_perm:[0,1,2,3]", 4), ("quad_perm:[0,1,2,3]", 8))):
            for j in range(4):
                A(f"v_mov_b32_dpp v{MSK + 20 * gm + 4 * k + j}, v{PK + 20 * gm + 16 + j} {ctl} row_mask:0xf bank_mask:{hex(bm)}")
        p = lambda ct: v(PK + 20 * gm + 4 * ct, 4)
        q = lambda k: v(MSK + 20 * gm + 4 * k, 4)
        seen = set()
        for t, a_, b_ in ((0, p(0), p(2)), (1, p(1), p(3)), (2, p(0), q(3)), (3, q(0), p(2)), (2, p(1), q(4)),
                          (3, q(1), p(3)), (3, q(2), q(3)), (3, q(2), q(4))):
            d = v(T + 4 * t, 4)
            A(f"{MF} {d}, {a_}, {b_}, {d if gm or t in seen else 0}")
            seen.add(t)
    X(172, f"v{L16} + ({WAVE} ^ 2) * 2048 + {L_RED}")
    X(173, f"v{L16} + {WAVE} * 2048 + {L_RED}")
    A(f"s_cmp_eq_u32 s68, 0\ns_cbranch_scc1 L_kv_nosw")
    for i in range(8): A(f"v_swap_b32 v{T + i}, v{T + 8 + i}")
    A("L_kv_nosw:")
    A(f"ds_write_b128 v172, {v(T + 8, 4)}\nds_write_b128 v172, {v(T + 12, 4)} offset:1024\ns_waitcnt lgkmcnt(0)\ns_barrier")
    C.stamp(R, 6, "R")
    A(f"ds_read_b128 {v(T + 8, 4)}, v173\nds_read_b128 {v(T + 12, 4)}, v173 offset:1024")
    A(f"""s_lshl_b32 s67, {QUAD}, 2
    s_add_u32 s67, s67, {WAVE}
    s_lshl_b32 s67, s67, 14
    s_add_u32 s67, s67, {WS_KV}
    s_lshl_b32 s64, {RB}, 10
    s_add_u32 s64, s64, s67
    s_waitcnt lgkmcnt(0)""")
    for i in range(8): A(f"v_add_f32 v{T + i}, v{T + i}, v{T + 8 + i}")
    for i in range(4): C.cvt(T + 8 + i, T + 2 * i, T + 2 * i + 1)
    A(f"s_bitcmp0_b32 {RB}, 0\ns_cbranch_scc1 L_kv_even\nv_swap_b32 v{T + 8}, v{T + 10}\nv_swap_b32 v{T + 9}, v{T + 11}\nL_kv_even:")
    A(f"buffer_store_dwordx4 {v(T + 8, 4)}, v{L16}, {SWS}, s64 offen sc1")
    for g in range(3): C.wo_group(OA, 4 * g)
    A("s_waitcnt vmcnt(15)")
    C.set_flag(VZ, VONE)
    C.stamp(R, 7, "pub1")
    C.h0_check(VZ, VH0)
    C.poll(f"v{PF1}", VD, 16)
    C.stamp(R, 8, "F1")
    G = ACC
    for r in range(16):
        if r % 4 == 0 and r: A("s_add_u32 s67, s67, 4096")
        A(f"buffer_load_dwordx4 {v(G + 4 * r, 4)}, v{L16}, {SWS}, s67 offen offset:{1024 * (r % 4)} sc1")
    A(f"s_waitcnt vmcnt(15)\n{MF} {v(T, 4)}, {v(SEL + 4, 4)}, {v(G, 4)}, 0")
    for i in range(15):
        d = v(T + (0 if i & 1 else 4), 4)
        A(f"s_waitcnt vmcnt({14 - i})\n{MF} {d}, {v(SEL + 2, 4)}, {v(G + 2 + 4 * i, 4)}, {d if i else 0}")
    A(f"{MF} {v(T, 4)}, {v(SEL, 4)}, {v(G + 60, 4)}, {v(T, 4)}")
    for i in (2, 3, 0, 1): C.cvt(T + 8 + i, T + 2 * i, T + 2 * i + 1)
    A(f"ds_write_b64 v{SCB}, {v(T + 10, 2)}\nds_write_b64 v{SCA}, {v(T + 8, 2)}\ns_waitcnt lgkmcnt(0)\ns_barrier")
    C.stamp(R, 9, "S")
    for g in range(3, 5): C.wo_group(OA, 4 * g)
    A("s_mov_b32 s3, 1\ns_branch L_outproj")


def loader(C):
    A, R = C.A, "ld"
    VZ = "v1"
    XD, WD, XR = 2, 6, 11
    FW, ACC, XF = 16, 56, 96
    X = LaneExpr(A, [f"v{i}" for i in range(20, 36)])
    A(f"L_loader:\ns_sub_u32 s68, {WAVE}, 4\nv_mov_b32 {VZ}, 0")
    X.env.update(w="s68")
    A(f"s_lshl_b32 s63, {RB}, 2\ns_add_u32 s63, s63, s68\ns_mul_i32 s63, s63, {32 * 1280}")
    X(16, "(v0 >> 3) * 1280 + s63")
    for t in range(2):
        X(XD + t, f"v16 + {8 * t * 1280} + (((v0 & 7) ^ ({4 * t} + (v0 >> 4))) * 16)")
        X(XD + 2 + t, f"v{XD + t} + {16 * 1280}")
    A("s_and_b32 s63, s68, 1\ns_lshl_b32 s63, s63, 5")
    for t in range(5):
        X(16, f"((v0 + {64 * t}) * 6554) >> 16")
        X(WD + t, f"((v16 ^ ((v16 >> 1) & 4)) + s63) * 3840 + ((v0 + {64 * t} - v16 * 10) * 16)")
    A(f"""s_lshr_b32 s69, s68, 1
    s_mul_i32 s3, {QUAD}, 160
    s_mul_i32 s66, s69, 1280
    s_add_u32 s66, s66, s3
    s_add_u32 s66, s66, 1280
    s_lshl_b32 s64, s68, 12
    s_mul_i32 s65, s69, 10256
    s_and_b32 s63, s68, 1
    s_mul_i32 s63, s63, 5120
    s_add_u32 s65, s65, s63
    s_mul_i32 s67, s69, {64 * 3840}
    s_add_u32 s3, s3, s67
    s_mul_i32 s67, s69, 10240
    s_add_u32 s67, s67, s63""")
    C.srds()
    C.clear_flag(VZ)

    def chunk(c):
        sl = (c & 3) * SLOT
        A(f"s_mov_b32 s63, {128 * c}")
        for t in range(4): C.dma(v(XD + t), SX, "s63", "s64", sl + 1024 * t)
        for t in range(5): C.dma(v(WD + t), SW, "s66", "s65", sl + 16384 + 1024 * t)
        A(f"s_add_u32 s66, s66, {64 * 3840}")

    def wq(p):
        if p == 3:
            A(f"s_mul_i32 s63, s69, {2 * SLOT + 7 * 10240}\ns_sub_u32 s63, s67, s63")
            base, add = "s63", 2 * SLOT + 6 * 10240
        else:
            base, add = "s67", (2 * SLOT + 2 * p * 10240 if p < 3 else 10240)
        for t in range(5): C.dma(v(WD + t), SW, "s3", base, add + 1024 * t)
        A(f"s_add_u32 s3, s3, {128 * 3840}")

    for c in range(4): chunk(c)
    C.stamp(R, 1, "iss")
    X(16, "v0 & 15", "n"); X(17, "v0 >> 4", "g")
    for ks in range(2):
        X(XR + ks, f"(w * 32 + n) * 128 + ((({4 * ks} + g) ^ (n >> 1)) * 16)")
        X(XR + 2 + ks, f"v{XR + ks} + {2 * SLOT}")
    for hh in range(2):
        X(18, f"(g * 8 + (({hh} ^ (g & 1)) * 4) + (n >> 2)) * 160 + {2 * SLOT}")
        X(ACC + hh, "v18 + (n & 3) * 8")
        X(ACC + 2 + hh, "v18 + 32 + (n & 3) * 40")
    waits = [27, 18, 18, 18, 18, 18, 18, 18, 14, 15]
    for c in range(10):
        A(f"s_waitcnt vmcnt({waits[c]}) lgkmcnt(0)\ns_barrier")
        if c == 0: C.stamp(R, 2, "B0")
        for ks in range(2):
            for rt in range(2):
                A(f"ds_read_b128 {v(XF + 16 * c + 8 * ks + 4 * rt, 4)}, v{XR + ((c & 3) >> 1) * 2 + ks} offset:{(c & 1) * SLOT + 2048 * rt}")
        if 1 <= c <= 6: chunk(c + 3)
        if c == 7: wq(0)
        if c == 8: wq(1); wq(2)
        if c == 9: wq(3); wq(4)
    QA, EP, VNE = 2, 12, "v11"
    A("s_waitcnt vmcnt(10) lgkmcnt(0)")
    for i in range(4): A(f"v_mov_b32 v{QA + i}, v{ACC + i}\nv_mov_b32 v{EP + i}, s11")
    A(f"v_mov_b32 {VNE}, {NEPSL}\ns_barrier")
    C.stamp(R, 3, "B10")

    def reads(st):
        c, ks, f, r = st >> 1, st & 1, FW + 20 * (st & 1), []
        off = 5120 * ks + 10240 * (c if c < 4 else c - 4 if c < 7 else c - 7)
        pre = ""
        if st in (8, 14):
            add = 40960 if st == 8 else -(40960 + 2 * SLOT)
            pre = "".join(f"v_add_u32 v{QA + i}, {add}, v{QA + i}\n" for i in range(4))
        for ct in range(5):
            for hh in range(2):
                a_, o = (QA, 40 * ct) if ct < 4 else (QA + 2, 0)
                r.append(pre + f"ds_read_b64_tr_b16 {v(f + 4 * ct + 2 * hh, 2)}, v{a_ + hh} offset:{off + o}")
                pre = ""
        return r

    for r in reads(0): A(r)
    for st in range(20):
        f, nx = FW + 20 * (st & 1), reads(st + 1) if st < 19 else []
        for ct in range(5):
            A(f"s_waitcnt lgkmcnt({8 if nx else 8 - 2 * ct})")
            for rt in range(2):
                d = v(ACC + 20 * rt + 4 * ct, 4)
                A(f"{MF} {d}, {v(f + 4 * ct, 4)}, {v(XF + 8 * st + 4 * rt, 4)}, {d if st else v(EP, 4)}")
                if nx: A(nx[2 * ct + rt])
        if st == 7:
            A("s_waitcnt vmcnt(0)\ns_barrier")
            C.stamp(R, 4, "R")
    C.stamp(R, 5, "qend")
    C.phi([ACC + 20 * rt + 4 * ct + i for ct in range(5) for rt in range(2) for i in range(4)], list(range(16, 24)), VNE)
    BQ, AO, O = 96, 128, 176
    for rt in range(2):
        for h in range(4):
            b = BQ + 16 * rt + 4 * h
            for j in range(2):
                C.cvt(b + j, ACC + 20 * rt + 4 * h + 2 * j, ACC + 20 * rt + 4 * h + 2 * j + 1)
                C.cvt(b + 2 + j, ACC + 20 * rt + 16 + 2 * j, ACC + 20 * rt + 16 + 2 * j + 1)
    A(f"""v_lshlrev_b32 v2, 4, v0
    v_add_u32 v3, {L_OP}, v2
    v_lshlrev_b32 v4, 3, v0
    v_mov_b32 v5, 1
    s_lshl_b32 s64, {RB}, 2
    s_add_u32 s64, s64, s68
    s_mul_i32 s64, s64, 40960
    s_add_u32 s64, s64, {WS_O}
    s_lshl_b32 s65, {QUAD}, 9
    s_add_u32 s65, s65, s64
    s_add_u32 s65, s65, 16384
    s_lshl_b32 s63, {QUAD}, 11
    s_add_u32 s64, s64, s63""")
    C.stamp(R, 6, "phiq")
    A("s_barrier")
    C.stamp(R, 7, "S")
    order = [8, 9, 10, 11, 0, 1, 2, 3, 4, 5, 6, 7]
    for k in order: A(f"ds_read_b128 {v(AO + 4 * k, 4)}, v3 offset:{1024 * k}")
    for rt in range(2):
        o = O + 24 * rt
        for i, k in enumerate(order):
            h = k & 3
            if rt == 0: A(f"s_waitcnt lgkmcnt({11 - i})")
            d = v(o + (4 * h if k < 4 else 16 if k < 8 else 20), 4)
            c = "0" if k <= 4 else v(EP, 4) if k == 8 else d
            A(f"{MF} {d}, {v(AO + 4 * k, 4)}, {v(BQ + 16 * rt + 4 * h, 4)}, {c}")
    for rt in range(2):
        o, p = O + 24 * rt, 16 + 12 * rt
        for h in range(4): A(f"v_rcp_f32 v{o + 20 + h}, v{o + 20 + h}")
        for h in range(4):
            for i in range(4): A(f"v_mul_f32 v{o + 4 * h + i}, v{o + 4 * h + i}, v{o + 20 + h}")
        for h in range(1, 4):
            A(f"v_mov_b32_dpp v{o + 20}, v{o + 20 + h} quad_perm:[0,1,2,3] row_mask:{hex(1 << h)} bank_mask:0xf")
        for j in range(8): C.cvt(p + j, o + 2 * j, o + 2 * j + 1)
        for i in range(4): A(f"v_mul_f32 v{o + 16 + i}, v{o + 16 + i}, v{o + 20}")
        A(f"buffer_store_dwordx4 {v(p, 4)}, v2, {SWS}, s64 offen sc1\nbuffer_store_dwordx4 {v(p + 4, 4)}, v2, {SWS}, s64 offen offset:1024 sc1")
        for j in range(2): C.cvt(p + 8 + j, o + 16 + 2 * j, o + 17 + 2 * j)
        A(f"buffer_store_dwordx2 {v(p + 8, 2)}, v4, {SWS}, s65 offen sc1")
        if rt == 0: A("s_add_u32 s64, s64, 20480\ns_add_u32 s65, s65, 20480")
    C.stamp(R, 8, "ost")
    A("s_barrier\ns_waitcnt vmcnt(0)")
    C.set_flag(VZ, "v5")
    C.stamp(R, 9, "pub2")
    C.finish()
```

```python
from asmlib import *

SX, SW, SO, SWS, SDBG, SOUT = "s[32:35]", "s[36:39]", "s[40:43]", "s[44:47]", "s[48:51]", "s[52:55]"
WAVE, XCD, IDX, LID, FLAGO, RB, QUAD = "s56", "s57", "s58", "s59", "s60", "s61", "s62"
WS_FLAG, WS_KV, WS_O, WS_B, WS_G, WS_STAMP = 0, 0x100000, 0x200000, 0x500000, 0x800000, 0x8000000
SLOT = 36880
L_WO = 2 * SLOT - 30720
L_RED = 30720
L_OP = 4 * SLOT
L_DUMP = L_OP + 12288
LDS_BYTES = 163840
USTR = 4672
L_T = L_WO + 102400
TSTR = 1568
MF = "v_mfma_f32_16x16x32_bf16"
EPS = 0x358637BD
LOG2E = 0x3FB8AA3B
NEPSL = 0xB5C1A2A0
SPIN = 200000


class Ctx:
    def __init__(self, opts):
        self.A = Asm()
        self.o = opts
        self.dbg = opts.get("stamps", False)
        self.names = {}

    def stamp(self, role, slot, name):
        if self.dbg:
            self.names.setdefault(role, {})[slot] = name
            self.A(f"s_memrealtime {s(70 + 2 * slot, 2)}")

    def finish(self):
        A = self.A
        if self.dbg:
            A("s_branch L_dump")
        else:
            A("s_endpgm")

    def dump(self):
        A = self.A
        if not self.dbg:
            return
        A("L_dump:\ns_waitcnt vmcnt(0)\ns_memrealtime s[100:101]\ns_waitcnt lgkmcnt(0)\ns_mov_b64 exec, -1")
        A(f"s_lshl_b32 s63, s2, 3\ns_add_u32 s63, s63, {WAVE}\ns_lshl_b32 s63, s63, 6\ns_add_u32 s63, s63, {WS_STAMP}\nv_mov_b32 v1, 0")
        for i in range(16):
            A(f"v_mov_b32 v{4 + i}, s{70 + 2 * i}")
        A("s_mov_b64 exec, 1")
        for i in range(4):
            A(f"buffer_store_dwordx4 {v(4 + 4 * i, 4)}, v1, {SWS}, s63 offen offset:{16 * i}")
        A("s_waitcnt vmcnt(0)\ns_endpgm")

    def srds(self):
        A = self.A
        A("s_waitcnt lgkmcnt(0)")
        for base, ptr in ((32, 4), (36, 6), (44, 30), (40, 8), (48, 28), (52, 26)):
            A(f"s_mov_b64 {s(base, 2)}, {s(ptr, 2)}")

    def clear_flag(self, vz):
        self.A(f"s_mov_b64 exec, 1\nbuffer_store_dword {vz}, {vz}, {SWS}, {FLAGO} offen sc1\ns_mov_b64 exec, -1")

    def set_flag(self, vz, vone):
        self.A(f"s_mov_b64 exec, 1\nbuffer_store_dword {vone}, {vz}, {SWS}, {FLAGO} offen sc1\ns_mov_b64 exec, -1")

    def h0_add(self, vt, vone):
        self.A(f"s_lshl_b32 s63, {WAVE}, 12\nv_mov_b32 {vt}, s63\ns_mov_b64 exec, 1\nbuffer_atomic_add {vone}, {vt}, {SDBG}, 0 offen sc1\ns_mov_b64 exec, -1")

    def h0_load(self, vz, vt):
        self.A(f"s_mov_b64 exec, 1\nbuffer_load_dword {vt}, {vz}, {SDBG}, 0 offen sc1\ns_mov_b64 exec, -1")

    def h0_check(self, vz, vt):
        A = self.A
        l, d = A.label("h0l"), A.label("h0d")
        A(f"""s_mov_b32 s63, 0
        {l}:
        v_readfirstlane_b32 s64, {vt}
        s_add_u32 s63, s63, 1
        s_cmp_ge_u32 s64, 256
        s_cbranch_scc1 {d}
        s_cmp_ge_u32 s63, {SPIN}
        s_cbranch_scc1 {d}
        s_sleep 4""")
        self.h0_load(vz, vt)
        A(f"s_waitcnt vmcnt(0)\ns_branch {l}\n{d}:")

    def poll(self, va, vt, nl, sleep=2):
        A = self.A
        l, d = A.label("pl"), A.label("pd")
        A(f"""s_mov_b32 s63, 0
        s_mov_b64 exec, {hex((1 << nl) - 1)}
        {l}:
        buffer_load_dword {vt}, {va}, {SWS}, 0 offen sc1
        s_add_u32 s63, s63, 1
        s_waitcnt vmcnt(0)
        v_cmp_ne_u32 vcc, 1, {vt}
        s_cbranch_vccz {d}
        s_cmp_ge_u32 s63, {SPIN}
        s_cbranch_scc1 {d}
        s_sleep {sleep}
        s_branch {l}
        {d}:
        s_mov_b64 exec, -1""")

    def dma(self, va, srd, soff, m0base, m0add):
        self.A(f"s_add_u32 m0, {m0base}, {m0add}\nbuffer_load_dwordx4 {va}, {srd}, {soff} offen lds")

    def wo_addr(self, X, base):
        for t in range(5):
            X(base + t, f"((((v0 + {64 * t}) * 6554) >> 16) * 1120) + (v0 + {64 * t}) * 16")

    def wo_group(self, base, gadd):
        A = self.A
        A(f"""s_add_u32 s64, {WAVE}, {gadd}
        s_mul_i32 s65, s64, 5120
        s_mul_i32 s64, s64, 40960
        s_lshr_b32 s66, {IDX}, 2
        s_mul_i32 s66, s66, 160
        s_add_u32 s64, s64, s66""")
        for t in range(5):
            self.dma(v(base + t), SO, "s64", "s65", L_WO + 1024 * t)

    def pf_kv(self, su, vx, vw, vd):
        A = self.A
        lw, le = A.label("pfw"), A.label("pfe")
        A(f"""s_mul_i32 s64, {su}, 3641
        s_lshr_b32 s64, s64, 16
        s_mul_i32 s65, s64, 18
        s_sub_u32 s65, {su}, s65
        s_cmp_ge_u32 s65, 8
        s_cbranch_scc1 {lw}
        s_lshr_b32 s66, {XCD}, 1
        s_lshl_b32 s66, s66, 3
        s_add_u32 s65, s65, s66
        s_mul_i32 s65, s65, {64 * 1280}
        s_lshl_b32 s64, s64, 7
        s_add_u32 s64, s64, s65
        buffer_load_dword {vd}, {vx}, {SX}, s64 offen
        s_branch {le}
        {lw}:
        s_mul_i32 s64, s64, {64 * 3840}
        s_cmp_ge_u32 s65, 13
        s_cselect_b32 s66, 7, 2
        s_add_u32 s65, s65, s66
        s_and_b32 s66, {XCD}, 1
        s_mul_i32 s66, s66, 5
        s_add_u32 s65, s65, s66
        s_lshl_b32 s65, s65, 7
        s_add_u32 s64, s64, s65
        buffer_load_dword {vd}, {vw}, {SW}, s64 offen
        {le}:""")

    def pf_wq(self, su, vw, vd):
        self.A(f"""s_mul_i32 s64, {su}, 13108
        s_lshr_b32 s64, s64, 16
        s_mul_i32 s65, s64, 5
        s_sub_u32 s65, {su}, s65
        s_mul_i32 s64, s64, {64 * 3840}
        s_and_b32 s66, {XCD}, 1
        s_mul_i32 s66, s66, 5
        s_add_u32 s65, s65, s66
        s_lshl_b32 s65, s65, 7
        s_add_u32 s64, s64, s65
        buffer_load_dword {vd}, {vw}, {SW}, s64 offen""")

    def pf_wo(self, su, vlin, vd):
        self.A(f"s_lshl_b32 s64, {su}, 13\nbuffer_load_dword {vd}, {vlin}, {SO}, s64 offen")

    def phi(self, regs, tmp, vne):
        A = self.A
        n = len(tmp)
        for i in range(0, len(regs), n):
            g = list(zip(regs[i:i + n], tmp))
            for r, t in g: A(f"v_fma_f32 v{t}, v{r}, s10, {vne}")
            for r, t in g: A(f"v_exp_f32_e64 v{t}, v{t} clamp\nv_max_f32 v{r}, s11, v{r}")
            for r, t in g: A(f"v_add_f32 v{r}, v{r}, v{t}")

    def cvt(self, d, a, b):
        self.A(f"v_cvt_pk_bf16_f32 v{d}, v{a}, v{b}")


def interleave(A, main, fill, per=1, start=0):
    fill = list(fill)
    for i, m in enumerate(main):
        A(m)
        if i >= start:
            for _ in range(per):
                if fill: A(fill.pop(0))
    for f in fill: A(f)
```

```python
from k_common import *

L_RAW = L_WO
L_SCR = L_WO + 32768


def conv(C):
    A, R = C.A, "cv"
    VZ, VONE, VH0 = "v1", "v2", "v3"
    X = LaneExpr(A, [f"v{i}" for i in range(236, 256)])
    A(f"""L_conv:
    s_sub_u32 s63, {IDX}, 16
    s_lshl_b32 s64, {XCD}, 3
    s_lshl_b32 s65, {XCD}, 1
    s_add_u32 s65, s65, 56
    s_cmp_lt_u32 s63, 8
    s_cselect_b32 {RB}, s64, s65
    s_add_u32 {RB}, {RB}, s63
    s_add_u32 {LID}, {RB}, 128
    s_lshl_b32 {FLAGO}, {LID}, 3
    s_add_u32 {FLAGO}, {FLAGO}, {WAVE}
    s_lshl_b32 {FLAGO}, {FLAGO}, 7
    s_lshl_b32 s68, {RB}, 3
    s_add_u32 s68, s68, {WAVE}
    v_mov_b32 {VZ}, 0
    v_mov_b32 {VONE}, 1""")
    X(4, "v0 * 4 + s68 * 256"); X(5, "s68 * 2")
    X(6, f"(v0 + {WAVE} * 256) * 1280 + {RB} * 16")
    C.srds()
    A("""global_load_dword v10, v4, s[12:13]
    global_load_dword v11, v4, s[14:15]
    global_load_ushort v14, v5, s[20:21]
    global_load_dword v12, v4, s[16:17]
    global_load_dword v13, v4, s[18:19]
    global_load_ushort v15, v5, s[22:23]""")
    C.clear_flag(VZ)
    A(f"s_lshl_b32 s66, {WAVE}, 12")
    for t in range(4):
        A(f"s_add_u32 s63, {IDX}, {t}\ns_and_b32 s63, s63, 3\ns_mul_i32 s64, s63, {64 * 1280}\ns_lshl_b32 s63, s63, 10\ns_add_u32 s63, s63, s66")
        C.dma("v6", SX, "s64", "s63", L_RAW)
    C.stamp(R, 1, "iss")
    X(7, "v0 & 15", "n"); X(8, "v0 >> 4", "g")
    SW_, SR_, TB, UB = 4, 5, 6, 9
    X(SW_, f"v0 * 8 + {WAVE} * 8704 + {L_SCR}")
    X(SR_, f"n * 544 + g * 16 + {WAVE} * 8704 + {L_SCR}")
    A(f"s_mul_i32 s69, {WAVE}, {TSTR}\ns_add_u32 s69, s69, {L_T + 32}\ns_mul_i32 s67, {WAVE}, {USTR}")
    X(UB, "n * 32 + g * 16 + s67 + 32")
    A("v_mov_b32 v16, 0\nv_mov_b32 v17, 0")
    X(18, "v0 * 8 + s67"); X(19, "(v0 & 3) * 8 + s69 - 32")
    A("ds_write_b64 v18, v[16:17]\nds_write_b64 v19, v[16:17]")
    OA = 20
    C.wo_addr(X, OA)
    X(25, "16 + n - g * 8", "lam")
    AD, SL = 26, 30
    GA, GS = 42, 54

    def idx(d, lag):
        X(230, lag)
        A(f"v_cvt_f32_i32 v{d}, v230\nv_cvt_pk_bf16_f32 v{d}, v{d}, v{d}")
        X(d, f"(v{d} & 65535) - {0x4300 - 128}")

    def sel(d, hi, lo, base):
        X(d, f"((v{hi} - v{base} * 2) * 514 + 256) + ((((v{lo} - v{base} * 2) * 514) + 256) << 16)")

    X(231, "lam"); X(232, "lam - 1"); X(233, "v232 >> 1")
    sel(SL, 231, 232, 233)
    X(AD, "(v233 - 3) * 4 + s69")
    k = SL + 1
    for ai, (c0, nd, back) in enumerate(((9, 2, 9), (17, 4, 4), (33, 4, 2))):
        idx(233, f"lam + {32 * c0 - (2 * nd - 1)}")
        X(233, "v233 >> 1")
        for t in range(nd):
            idx(231, f"lam + {32 * c0 - 2 * t}"); idx(232, f"lam + {32 * c0 - 2 * t - 1}")
            sel(k, 231, 232, 233); k += 1
        X(AD + 1 + ai, f"(v233 - {back}) * 4 + s69")
    for si, c0 in enumerate((8, 16, 32)):
        for t in range(4):
            idx(231, f"lam + {32 * c0 - 2 * t}"); idx(232, f"lam + {32 * c0 - 2 * t - 1}")
            X(233, "v232 >> 1")
            sel(GS + 4 * si + t, 231, 232, 233)
            X(GA + 4 * si + t, "v233 * 4 + s69")
    T0, T1, T2 = 66, 67, 69
    X(T0, "((g >> 1) * 128 + n * 8 + (g & 1) * 4) * 2 + s69")
    X(T1, "((256 + g * 64 + n * 4) if g < 2 else (256 + g * 64 + n * 2)) * 2 + s69")
    X(T1 + 1, f"v{T1} + (4 if g < 2 else 64)")
    X(T2, "(512 + g * 64 + n) * 2 + s69")
    C.stamp(R, 2, "adr")

    A(f"s_waitcnt vmcnt(4)\ns_barrier\ns_mov_b32 s10, {LOG2E}\ns_mov_b32 s11, 0x3e22f983")
    C.h0_add(VH0, VONE)
    C.stamp(R, 3, "par")
    A("""v_lshlrev_b32 v14, 16, v14
    v_mul_f32 v14, s10, v14
    v_lshlrev_b32 v70, 16, v10
    v_and_b32 v71, 0xffff0000, v10
    v_exp_f32 v14, v14
    v_mul_f32 v70, s10, v70
    v_mul_f32 v71, s10, v71
    v_exp_f32 v70, v70
    v_exp_f32 v71, v71
    v_cvt_pk_bf16_f32 v14, v14, v14
    v_lshlrev_b32 v72, 16, v11
    v_and_b32 v73, 0xffff0000, v11
    v_cvt_pk_bf16_f32 v10, v70, v71
    v_lshlrev_b32 v14, 16, v14
    v_lshlrev_b32 v70, 16, v10
    v_and_b32 v71, 0xffff0000, v10
    v_lshlrev_b32 v15, 16, v15""")
    for i in range(4): A(f"v_mul_f32 v{70 + i}, v{70 + i}, v14")
    for i in range(2): A(f"v_mul_f32 v{70 + i}, s10, v{70 + i}\nv_mul_f32 v{72 + i}, s11, v{72 + i}")
    E8, P, H, RA, RBb, W = 74, 78, 110, 118, 122, 126
    RF, CF, D = 132, 164, 196

    def cexp(d, p, conj):
        fp = {1: "1.0", 8: "0x41000000", 128: "0x43000000"}[p]
        for i in range(2):
            A(f"v_mul_f32 v{230 + 2 * i}, {fp}, v{70 + i}\nv_mul_f32 v{231 + 2 * i}, {fp}, v{72 + i}")
        for i in range(2):
            A(f"v_exp_f32_e64 v{230 + 2 * i}, -v{230 + 2 * i}\nv_fract_f32 v{231 + 2 * i}, v{231 + 2 * i}")
        for i in range(2):
            A(f"v_cos_f32 v{d + 2 * i}, v{231 + 2 * i}\nv_sin_f32 v{d + 2 * i + 1}, v{231 + 2 * i}")
        for i in range(2):
            A(f"v_mul_f32 v{d + 2 * i}, v{d + 2 * i}, v{230 + 2 * i}")
            A(f"v_mul_f32_e64 v{d + 2 * i + 1}, {'-' if conj else ''}v{d + 2 * i + 1}, v{230 + 2 * i}")

    def cmul(d, a_, b_):
        for i in (0, 2): A(f"v_pk_mul_f32 {v(d + i, 2)}, {v(a_ + i, 2)}, {v(b_ + i, 2)} op_sel:[0,0] op_sel_hi:[0,1]")
        for i in (0, 2): A(f"v_pk_fma_f32 {v(d + i, 2)}, {v(a_ + i, 2)}, {v(b_ + i, 2)}, {v(d + i, 2)} op_sel:[1,1,0] op_sel_hi:[1,0,1] neg_lo:[0,1,0]")

    wk = [0]

    def put(row, z):
        w = W + 2 * (wk[0] % 3); wk[0] += 1
        C.cvt(w, z, z + 1); C.cvt(w + 1, z + 2, z + 3)
        A(f"ds_write_b64 v{SW_}, {v(w, 2)} offset:{544 * row}")

    def get(f):
        for st in range(8): A(f"ds_read_b128 {v(f + 4 * st, 4)}, v{SR_} offset:{64 * st}")

    def mm(d):
        A("s_waitcnt lgkmcnt(0)")
        for st in range(8): A(f"{MF} {v(d, 4)}, {v(CF + 4 * st, 4)}, {v(RF + 4 * st, 4)}, {v(d, 4) if st else 0}")

    cexp(E8, 8, False)
    A(f"""v_add_f32 v14, v14, v14
    v_lshlrev_b32 v{RA}, 16, v12
    v_lshlrev_b32 v{RA + 1}, 16, v13
    v_and_b32 v{RA + 2}, 0xffff0000, v12
    v_and_b32 v{RA + 3}, 0xffff0000, v13""")
    for i in range(4): A(f"v_mul_f32 v{RA + i}, v{RA + i}, v14")
    cur, nxt = RA, RBb
    for j in range(16):
        if j < 15: cmul(nxt, cur, E8)
        put(j, cur)
        cur, nxt = nxt, cur
    get(RF)
    Pp = lambda t: P + 4 * t
    cexp(Pp(1), 1, True); cexp(E8, 128, True)
    A(f"v_mov_b32 v{P}, 1.0\nv_mov_b32 v{P + 1}, 0\nv_mov_b32 v{P + 2}, 1.0\nv_mov_b32 v{P + 3}, 0")
    for t in range(2, 8): cmul(Pp(t), Pp(t - 1), Pp(1))
    for t in range(8): put(t, Pp(t))
    put(8, E8)
    for t in range(1, 8):
        z = RA if t & 1 else RBb
        cmul(z, E8, Pp(t)); put(8 + t, z)
    get(CF)
    cur, nxt = H, H + 4
    cmul(cur, E8, E8)
    mm(D)
    row = 0
    for sidx in range(2, 8):
        cmul(nxt, cur, E8)
        put(row, cur); row += 1
        for t in ((2, 4, 6) if sidx < 4 else (4,)):
            z = RA if row & 1 else RBb
            cmul(z, cur, Pp(t)); put(row, z); row += 1
        cur, nxt = nxt, cur
    get(CF)
    A(f"s_mov_b64 exec, 1\nv_add_f32 v{D}, v{D}, v15\ns_mov_b64 exec, -1")
    C.cvt(D, D, D + 1); C.cvt(D + 1, D + 2, D + 3)
    A(f"ds_write_b64 v{T0}, {v(D, 2)}")
    mm(D + 4)
    for sidx in range(8, 17):
        if sidx < 16: cmul(nxt, cur, E8)
        put(sidx - 8, cur)
        cur, nxt = nxt, cur
    get(CF)
    C.cvt(D + 4, D + 4, D + 5); C.cvt(D + 5, D + 6, D + 7)
    A(f"ds_write_b32 v{T1}, v{D + 4}\nds_write_b32 v{T1 + 1}, v{D + 5}")
    mm(D + 8)
    X(74, f"(g * 16 + (n & 2) * 4 + (n >> 2)) * 16 + (n & 1) * 8 + {WAVE} * 4096 + {L_RAW}")
    X(75, f"(n & 7) * {USTR} + (256 + {WAVE} * 256 + g * 16 + (n >> 3) * 8) * 2")
    C.cvt(D + 8, D + 8, D + 9); C.cvt(D + 9, D + 10, D + 11)
    for i in range(4):
        A(f"ds_write_b16{'_d16_hi' if i & 1 else ''} v{T2}, v{D + 8 + (i >> 1)} offset:{32 * i}")
    C.stamp(R, 4, "tab")
    A("s_waitcnt vmcnt(1)")
    C.stamp(R, 5, "x")
    for t in range(4):
        for hh in range(2): A(f"ds_read_b64_tr_b16 {v(80 + 4 * t + 2 * hh, 2)}, v74 offset:{1024 * t + 64 * hh}")
    ST, RW, AF, BF, ACC = 96, 108, 132, 164, 70
    for si in range(3):
        for t in range(4): A(f"ds_read2_b32 {v(RW + 8 * si + 2 * t, 2)}, v{GA + 4 * si + t} offset1:1")
    for t in range(4): A(f"s_waitcnt lgkmcnt({15 if t == 0 else 13})\nds_write_b128 v75, {v(80 + 4 * t, 4)} offset:{128 * t}")
    A("s_waitcnt lgkmcnt(0)")
    for si in range(3):
        for t in range(4):
            r = RW + 8 * si + 2 * t
            A(f"v_perm_b32 v{GA + 4 * si + t}, v{r + 1}, v{r}, v{GS + 4 * si + t}")
    A("s_barrier")
    C.stamp(R, 6, "C1")

    def reads(r):
        b = BF + 32 * (r & 1)
        l = [f"ds_read2_b32 {v(RW, 2)}, v{AD} offset0:{16 * r} offset1:{16 * r + 1}",
             f"ds_read2_b32 {v(RW + 2, 2)}, v{AD} offset0:{16 * r + 2} offset1:{16 * r + 3}",
             f"ds_read_b32 v{RW + 4}, v{AD} offset:{64 * r + 16}"]
        if r:
            l += [f"ds_read_b32 v{RW + 5}, v{AD + 1} offset:{32 * r}",
                  f"ds_read2_b32 {v(RW + 6, 2)}, v{AD + 1} offset0:{8 * r + 1} offset1:{8 * r + 2}"]
        for a_ in range(2, 8):
            if r == 0 and a_ in (2, 4): continue
            ad, o = (AD + 2, 4 * (8 * (a_ - 2) + r)) if a_ < 4 else (AD + 3, 2 * (8 * (a_ - 4) + r))
            l.append(f"ds_read2_b32 {v(RW + 4 + 2 * a_, 2)}, v{ad} offset0:{o} offset1:{o + 1}")
        for e in range(8): l.append(f"ds_read_b128 {v(b + 4 * e, 4)}, v{UB} offset:{64 * (8 * e - r) + 448}")
        return l

    def perms(r):
        for t in range(4): A(f"v_perm_b32 v{AF + t}, v{RW + 4 - t}, v{RW + 3 - t}, v{SL}")
        if r:
            for t in range(4): A(f"v_perm_b32 v{AF + 4 + t}, v{RW + 7 - (t >> 1)}, v{RW + 6 - (t >> 1)}, v{SL + 1 + (t & 1)}")
        for a_ in range(2, 8):
            if r == 0 and a_ in (2, 4): continue
            for t in range(4):
                A(f"v_perm_b32 v{AF + 4 * a_ + t}, v{RW + 5 + 2 * a_}, v{RW + 4 + 2 * a_}, v{SL + (3 if a_ < 4 else 7) + t}")

    for x in reads(0): A(x)
    for g in range(2): C.wo_group(OA, 8 * g)
    A(f"s_cmp_ge_u32 {WAVE}, 4\ns_cbranch_scc1 L_cv_nowo")
    C.wo_group(OA, 16)
    A("L_cv_nowo:")
    for r in range(8):
        A("s_waitcnt lgkmcnt(0)")
        perms(r)
        b, m = BF + 32 * (r & 1), []
        for a_ in range(8):
            fa = GA + 4 * {1: 0, 2: 1, 4: 2}[a_] if r == 0 and a_ in (1, 2, 4) else AF + 4 * a_
            for g in range(a_, 8):
                d = v(ACC + 4 * g, 4)
                m.append(f"{MF} {d}, {v(fa, 4)}, {v(b + 4 * (g - a_), 4)}, {d if r or a_ else 0}")
        interleave(A, m, reads(r + 1) if r < 7 else [], per=1)
        if r == 6: C.h0_load(VZ, VH0)
    C.stamp(R, 7, "toep")
    X(4, "n * 32 + g * 8 + s67 + 512")
    X(5, f"(n >> 2) * {USTR} + (256 + {WAVE} * 256 + g * 16 + (n & 3) * 4) * 2")
    X(6, "v0 * 16")
    A(f"s_lshl_b32 s64, {RB}, 15\ns_lshl_b32 s65, {WAVE}, 12\ns_add_u32 s64, s64, s65\ns_add_u32 s64, s64, {WS_B}")
    for g in range(8):
        d = ACC + 4 * g
        C.cvt(d, d, d + 1); C.cvt(d + 1, d + 2, d + 3)
        A(f"ds_write_b64 v4, {v(d, 2)} offset:{512 * g}")
    A("s_waitcnt vmcnt(0) lgkmcnt(0)\ns_barrier")
    C.stamp(R, 8, "C2")
    for t in range(4):
        for hh in range(2): A(f"ds_read_b64_tr_b16 {v(AF + 4 * t + 2 * hh, 2)}, v5 offset:{128 * t + 4 * USTR * hh}")
    for t in range(4):
        A(f"s_waitcnt lgkmcnt({6 - 2 * t})\nbuffer_store_dwordx4 {v(AF + 4 * t, 4)}, v6, {SWS}, s64 offen offset:{1024 * t} sc1")
    A("s_waitcnt vmcnt(0)")
    C.set_flag(VZ, VONE)
    C.stamp(R, 9, "pub")
    A(f"s_cmp_ge_u32 {WAVE}, 4\ns_cbranch_scc1 L_end")
    C.h0_check(VZ, VH0)
    A("s_mov_b32 s3, 0\ns_branch L_outproj")
```

```python
from k_common import *


def spare(C):
    A, R = C.A, "sp"
    VZ, VONE, VH0, VD = "v1", "v2", "v3", "v4"
    X = LaneExpr(A, [f"v{i}" for i in range(236, 256)])
    A(f"""L_spare:
    s_sub_u32 s68, {IDX}, 26
    s_lshl_b32 s64, {XCD}, 2
    s_lshl_b32 s65, {XCD}, 1
    s_add_u32 s65, s65, 28
    s_cmp_lt_u32 s68, 4
    s_cselect_b32 {RB}, s64, s65
    s_add_u32 {RB}, {RB}, s68
    s_add_u32 {LID}, {RB}, 208
    s_lshl_b32 {FLAGO}, {LID}, 3
    s_add_u32 {FLAGO}, {FLAGO}, {WAVE}
    s_lshl_b32 {FLAGO}, {FLAGO}, 7
    s_mul_i32 s69, {WAVE}, 6
    s_add_u32 s69, s69, s68
    v_mov_b32 {VZ}, 0
    v_mov_b32 {VONE}, 1""")
    X(5, "v0 * 1280"); X(6, "v0 * 3840"); X(7, "v0 * 128")
    C.srds()
    C.clear_flag(VZ)
    u0 = 18 + 64 * C.o.get("npa", 1)
    n = 0
    while u0 < 180:
        A(f"s_add_u32 s67, s69, {u0}\ns_min_u32 s67, s67, 179")
        C.pf_kv("s67", "v5", "v6", VD)
        u0 += 48; n += 1
    C.pf_wq("s69", "v6", VD)
    A("s_and_b32 s67, s69, 1\ns_add_u32 s67, s67, 48")
    C.pf_wq("s67", "v6", VD)
    C.stamp(R, 1, "pf")
    A(f"s_waitcnt vmcnt({n + 2})\ns_barrier")
    C.h0_add(VH0, VONE)
    for i in range(3):
        A(f"s_add_u32 s67, s69, {48 * i}\ns_min_u32 s67, s67, 99")
        C.pf_wo("s67", "v7", VD)
    OA = 8
    C.wo_addr(X, OA)
    A("s_cmp_ge_u32 s68, 4\ns_cbranch_scc1 L_sp_nog")
    X(14, "(v0 & 7) * 16")
    X(15, f"{RB} * 64 + {WAVE} * 8 + (v0 >> 3)")
    X(13, "v15 * 1280 + v14")
    X(15, "v15 * 4")
    for i in range(10):
        A(f"buffer_load_dwordx4 {v(20 + 4 * i, 4)}, v13, {SX}, 0 offen offset:{128 * i}")
        A(f"global_load_dwordx4 {v(60 + 4 * i, 4)}, v14, s[24:25] offset:{128 * i}")
    A("v_mov_b32 v16, 0\nv_mov_b32 v17, 0")
    for i in range(10):
        A(f"s_waitcnt vmcnt({18 - 2 * i})")
        for j in range(4): A(f"v_dot2c_f32_bf16 v{16 + (j & 1)}, v{20 + 4 * i + j}, v{60 + 4 * i + j}")
    A(f"""s_nop 3
    v_add_f32 v16, v16, v17
    v_add_f32_dpp v16, v16, v16 quad_perm:[1,0,3,2] row_mask:0xf bank_mask:0xf
    v_add_f32_dpp v16, v16, v16 quad_perm:[2,3,0,1] row_mask:0xf bank_mask:0xf
    v_add_f32_dpp v16, v16, v16 row_half_mirror row_mask:0xf bank_mask:0xf
    v_mul_f32 v16, {LOG2E}, v16
    v_exp_f32_e64 v16, -v16
    v_add_f32 v16, 1.0, v16
    v_rcp_f32 v16, v16
    s_mov_b32 s64, {WS_G}
    s_mov_b32 exec_lo, 0x01010101
    s_mov_b32 exec_hi, 0x01010101
    buffer_store_dword v16, v15, {SWS}, s64 offen sc1
    s_mov_b64 exec, -1
    s_waitcnt vmcnt(0)""")
    C.set_flag(VZ, VONE)
    C.stamp(R, 2, "g")
    A("L_sp_nog:")
    for g in range(2): C.wo_group(OA, 8 * g)
    A(f"s_cmp_ge_u32 {WAVE}, 4\ns_cbranch_scc1 L_sp_nowo")
    C.wo_group(OA, 16)
    A("L_sp_nowo:\ns_waitcnt vmcnt(0)\ns_barrier")
    C.stamp(R, 3, "wo")
    A(f"s_cmp_ge_u32 {WAVE}, 4\ns_cbranch_scc1 L_end")
    C.h0_load(VZ, VH0)
    A("s_waitcnt vmcnt(0)")
    C.h0_check(VZ, VH0)
    A("s_mov_b32 s3, 0")


def outproj(C):
    A, R = C.A, "op"
    RING = 6
    AM, AT, PF, L16, L8, BA, BA4, GA, OA, OA4, VT = 2, 4, 6, 7, 8, 9, 10, 11, 12, 13, 14
    BD, GV, ACC, BF, AF = 16, 15, 28, 48, 128
    X = LaneExpr(A, [f"v{i}" for i in range(48, 64)])
    A("L_outproj:")
    C.stamp(R, 10, "op")
    X(26, "v0 & 15", "n"); X(27, "v0 >> 4", "g")
    X(AM, f"(g * 4 + (n >> 2)) * 160 + (n & 3) * 8 + {L_WO}")
    X(AT, f"v{AM} + g * 2560 + 2560")
    X(AM + 1, f"v{AM} + 51200"); X(AT + 1, f"v{AT} + 51200")

    def reads(st):
        f, r = AF + 20 * (st % RING), []
        for t in range(5):
            for hf in range(2):
                a_, o = (AM, (40 * st + 20 * hf) * 160) if st < 16 else (AT, (2 * (st - 16) + hf) * 12800)
                r.append(f"ds_read_b64_tr_b16 {v(f + 4 * t + 2 * hf, 2)}, v{a_ + o // 51200} offset:{o % 51200 + 32 * t}")
        return r

    for st in range(RING):
        for x in reads(st): A(x)
    A(f"""s_and_b32 s64, {IDX}, 3
    s_lshl_b32 s65, {XCD}, 2
    s_add_u32 s64, s64, s65
    s_lshl_b32 s67, s64, 2
    s_add_u32 s67, s67, {WAVE}
    s_lshr_b32 s68, {IDX}, 2
    s_mul_i32 s69, s68, 10""")
    X.env.update(rblk="s64", rt="s67", cb="s68", cg="s69")
    X(PF, f"((((rt >> 3) * 8 + v0) * 8 + 4 + ((rt >> 1) & 3)) if v0 < 8 else ((120 + cg + v0) * 8 + {XCD}))")
    X(PF, f"(v{PF} if v0 < 18 else ((208 + rblk) * 8 + {WAVE} * 2 + (v0 & 1))) * 128")
    X(L16, "v0 * 16"); X(L8, "v0 * 8")
    X(1, "rt * 16 + n", "row")
    X(VT, "(g & 1) * 2 + (g >> 1)")
    X(BA, f"(cg + v{VT}) * 32768 + row * 16 + {WS_B}")
    X(BA4, f"(cg + 8 + (g >> 1)) * 32768 + row * 16 + (g & 1) * 8 + {WS_B}")
    X(GA, f"row * 4 + {WS_G}")
    X(OA4, "row * 1280 + cb * 160")
    X(OA, f"v{OA4} + v{VT} * 16"); X(OA4, f"v{OA4} + g * 8 + 128")
    A(f"s_mul_i32 s66, s67, 20480\ns_add_u32 s66, s66, {WS_O}")
    A("s_cmp_eq_u32 s3, 0\ns_cbranch_scc1 L_op_now\ns_waitcnt vmcnt(0)\ns_barrier\nL_op_now:")
    C.stamp(R, 11, "W")
    C.poll(f"v{PF}", f"v{VT}", 20)
    C.stamp(R, 12, "F2")
    for st in range(16):
        if st % 4 == 0 and st: A("s_add_u32 s66, s66, 4096")
        A(f"buffer_load_dwordx4 {v(BF + 4 * st, 4)}, v{L16}, {SWS}, s66 offen offset:{1024 * (st % 4)} sc1")
    A("s_add_u32 s66, s66, 4096\ns_mov_b32 s65, 131072")
    for q in range(8): A(f"buffer_load_dwordx2 {v(BF + 64 + 2 * q, 2)}, v{L8}, {SWS}, s66 offen offset:{512 * q} sc1")
    A(f"""buffer_load_dwordx4 {v(BD, 4)}, v{BA}, {SWS}, 0 offen sc1
    buffer_load_dwordx4 {v(BD + 4, 4)}, v{BA}, {SWS}, s65 offen sc1
    buffer_load_dwordx2 {v(BD + 8, 2)}, v{BA4}, {SWS}, 0 offen sc1
    buffer_load_dword v{GV}, v{GA}, {SWS}, 0 offen sc1""")
    for st in range(20):
        left = 27 - st if st < 16 else 10 - 2 * (st - 16)
        lg = 0 if st == 0 or st == 19 else 10
        A(f"s_waitcnt vmcnt({left}) lgkmcnt({lg})")
        f = AF + 20 * (st % RING)
        m = [f"{MF} {v(ACC + 4 * t, 4)}, {v(f + 4 * t, 4)}, {v(BF + 4 * st, 4)}, {v(ACC + 4 * t, 4) if st else 0}" for t in range(5)]
        nx = st - 1 + RING
        interleave(A, m, reads(nx) if 0 < st and nx < 20 else [], per=2)
    C.stamp(R, 13, "mm")
    A("s_waitcnt vmcnt(0)")
    U = BF
    for j in range(10): A(f"v_lshlrev_b32 v{U + 2 * j}, 16, v{BD + j}\nv_and_b32 v{U + 2 * j + 1}, 0xffff0000, v{BD + j}")
    for p in range(2):
        for i in range(4): A(f"v_permlane16_swap_b32 v{ACC + 8 * p + i}, v{ACC + 8 * p + 4 + i}")
    for i in range(20): A(f"v_sub_f32 v{ACC + i}, v{ACC + i}, v{U + i}")
    for i in range(20): A(f"v_fma_f32 v{ACC + i}, v{ACC + i}, v{GV}, v{U + i}")
    for j in range(10): C.cvt(BD + j, ACC + 2 * j, ACC + 2 * j + 1)
    A(f"""buffer_store_dwordx4 {v(BD, 4)}, v{OA}, {SOUT}, 0 offen
    buffer_store_dwordx4 {v(BD + 4, 4)}, v{OA}, {SOUT}, 0 offen offset:64
    buffer_store_dwordx2 {v(BD + 8, 2)}, v{OA4}, {SOUT}, 0 offen""")
    C.stamp(R, 14, "st")
```

```python
import sys, json
from k_common import *
import k_attn, k_conv, k_out, hazard


def build(opts):
    C = Ctx(opts)
    A = C.A
    A("s_cmp_ge_u32 s2, 256\ns_cbranch_scc1 L_exit")
    C.stamp("op", 0, "start")
    A(f"""s_load_dwordx4 s[4:7], s[0:1], 0
    s_load_dwordx8 s[24:31], s[0:1], 80
    s_load_dwordx2 s[8:9], s[0:1], 16
    s_load_dwordx8 s[12:19], s[0:1], 32
    s_load_dwordx4 s[20:23], s[0:1], 64
    v_lshrrev_b32 v1, 6, v0
    v_and_b32 v0, 63, v0
    s_and_b32 {XCD}, s2, 7
    v_readfirstlane_b32 {WAVE}, v1
    s_lshr_b32 {IDX}, s2, 3""")
    for base, n in ((32, 2621440), (36, 2457600), (40, 819200), (44, 0x10000000), (48, 256), (52, 2621440)):
        A(f"s_mov_b32 s{base + 2}, {n}\ns_mov_b32 s{base + 3}, 0x20000")
    A(f"s_cmp_ge_u32 {IDX}, 26\ns_cbranch_scc1 L_spare\ns_cmp_ge_u32 {IDX}, 16\ns_cbranch_scc1 L_conv")
    k_attn.attn_ids(C)
    k_attn.compute(C)
    k_attn.loader(C)
    k_conv.conv(C)
    k_out.spare(C)
    k_out.outproj(C)
    A("L_end:")
    C.finish()
    C.dump()
    A("L_exit:\ns_endpgm")
    body = "\n".join(hazard.fix(A.lines)) + "\n"
    hdr = f"; stamps: {json.dumps(C.names)}\n" if C.dbg else ""
    return wrap(body, 256, 512, LDS_BYTES, vgpr=256, header=hdr)


if __name__ == "__main__":
    opts = {k: int(x) for k, x in (a_.split("=") for a_ in sys.argv[2:])}
    open(sys.argv[1], "w").write(build(opts))
```

```python
import sys, json
from k_common import *
import k_attn, k_conv, k_out, hazard


def build(opts):
    C = Ctx(opts)
    A = C.A
    A("s_cmp_ge_u32 s2, 256\ns_cbranch_scc1 L_exit")
    C.stamp("op", 0, "start")
    if opts.get("diag"): A("s_memrealtime s[96:97]")
    A(f"""s_load_dwordx4 s[4:7], s[0:1], 0
    s_load_dwordx8 s[24:31], s[0:1], 80
    s_load_dwordx2 s[8:9], s[0:1], 16
    s_load_dwordx8 s[12:19], s[0:1], 32
    s_load_dwordx4 s[20:23], s[0:1], 64
    v_lshrrev_b32 v1, 6, v0
    v_and_b32 v0, 63, v0
    s_and_b32 {XCD}, s2, 7
    v_readfirstlane_b32 {WAVE}, v1
    s_lshr_b32 {IDX}, s2, 3""")
    for base, n in ((32, 2621440), (36, 2457600), (40, 819200), (44, 0x10000000), (48, 256), (52, 2621440)):
        A(f"s_mov_b32 s{base + 2}, {n}\ns_mov_b32 s{base + 3}, 0x20000")
    A(f"s_cmp_ge_u32 {IDX}, 26\ns_cbranch_scc1 L_spare\ns_cmp_ge_u32 {IDX}, 16\ns_cbranch_scc1 L_conv")
    k_attn.attn_ids(C)
    k_attn.compute(C)
    k_attn.loader(C)
    k_conv.conv(C)
    k_out.spare(C)
    k_out.outproj(C)
    if opts.get("diag") == 1:
        A("""s_waitcnt vmcnt(0)
        s_memrealtime s[98:99]
        s_waitcnt lgkmcnt(0)
        s_sub_u32 s63, s98, s96
        s_mul_i32 s63, s63, 3
        s_min_u32 s63, s63, 100000""")
    if opts.get("diag") == 2:
        A("""s_getreg_b32 s63, hwreg(HW_REG_XCC_ID, 0, 4)
        s_cmp_eq_u32 s63, s57
        s_cselect_b32 s63, 0, 10000""")
    if opts.get("diag"):
        A("""L_diag:
        s_sleep 2
        s_memrealtime s[98:99]
        s_waitcnt lgkmcnt(0)
        s_sub_u32 s64, s98, s96
        s_cmp_lt_u32 s64, s63
        s_cbranch_scc1 L_diag""")
    A("L_end:")
    C.finish()
    C.dump()
    A("L_exit:\ns_endpgm")
    body = "\n".join(hazard.fix(A.lines)) + "\n"
    hdr = f"; stamps: {json.dumps(C.names)}\n" if C.dbg else ""
    return wrap(body, 256, 512, LDS_BYTES, vgpr=256, header=hdr)


if __name__ == "__main__":
    opts = {k: int(x) if x.isdigit() else x for k, x in (a_.split("=") for a_ in sys.argv[2:])}
    open(sys.argv[1], "w").write(build(opts))
```

```python
from k_common import *


def attn_ids(C):
    C.A(f"""s_lshr_b32 {RB}, {XCD}, 1
    s_lshl_b32 {RB}, {RB}, 2
    s_and_b32 s63, {IDX}, 3
    s_add_u32 {RB}, {RB}, s63
    s_and_b32 {QUAD}, {XCD}, 1
    s_lshl_b32 {QUAD}, {QUAD}, 2
    s_lshr_b32 s63, {IDX}, 2
    s_add_u32 {QUAD}, {QUAD}, s63
    s_mov_b32 s10, {LOG2E}
    s_mov_b32 s11, {EPS}
    s_cmp_ge_u32 {WAVE}, 4
    s_cbranch_scc1 L_loader""")


def compute(C):
    A, R = C.A, "kv"
    VZ, VONE, VD, VH0, VNE = "v1", "v2", "v3", "v4", "v5"
    XA, WM, WT = 6, 10, 14
    SCA, SCB, L16, PF1, OA = 18, 19, 20, 21, 22
    EP, EPM, SEL, MSK, FR, ACC = 28, 32, 36, 44, 84, 176
    X = LaneExpr(A, [f"v{i}" for i in range(156, 172)])
    A(f"v_mov_b32 {VZ}, 0\nv_mov_b32 {VONE}, 1")
    X(172, "v0 * 1280"); X(173, "v0 * 3840")
    C.srds()
    pf = C.plan("kv")
    npf = len(pf)
    A(f"s_lshl_b32 s67, {WAVE}, 4\ns_add_u32 s67, s67, {IDX}")
    for u in pf: C.pf_unit("s67", u, 64, "v172", "v173", None, VD)
    C.stamp(R, 1, "pf")
    A(f"s_lshr_b32 s68, {WAVE}, 1\ns_and_b32 s69, {WAVE}, 1")
    X.env.update(wr="s68", wp="s69")
    X(174, "v0 & 15", "n"); X(175, "v0 >> 4", "g")
    for ks in range(2):
        X(XA + ks, f"(wr * 64 + n) * 128 + ((({4 * ks} + g) ^ (n >> 1)) * 16)")
        X(XA + 2 + ks, f"v{XA + ks} + {2 * SLOT}")
    for hh in range(2):
        X(172, f"(g * 8 + (({hh} ^ (g & 1)) * 4) + (n >> 2)) * 160 + wp * 80 + 16384")
        X(WM + hh, "v172 + (n & 3) * 8")
        X(WT + hh, "v172 + 32 + (n & 1) * 40 + ((n >> 1) & 1) * 10256")
        X(WM + 2 + hh, f"v{WM + hh} + {2 * SLOT}")
        X(WT + 2 + hh, f"v{WT + hh} + {2 * SLOT}")
    X(L16, "v0 * 16")
    A(f"s_lshl_b32 {FLAGO}, {QUAD}, 2\ns_add_u32 {FLAGO}, {FLAGO}, {WAVE}\ns_mul_i32 {FLAGO}, {FLAGO}, {FS}\ns_add_u32 {FLAGO}, {FLAGO}, {FL1}")
    X(PF1, f"n * 4 + {FLAGO}")
    A(f"s_lshl_b32 s63, {RB}, 2\ns_add_u32 {FLAGO}, {FLAGO}, s63")
    C.wo_addr(X, OA)
    X(172, "wp * 2 + ((n >> 2) & 1)", "h")
    X(173, "((8 + h) * 64 + (n & 3) * 4 + h) if n < 8 else ((4 + h) * 64 + h * 4 + (n & 3))")
    X(SCA, f"{L_OP} + (((wp * 128 + v0) if wr == 0 else (v173 + g * 16)) * 16)")
    X(172, "wp * 2 + (g & 1)", "h")
    X(173, f"((4 + h) * 64 + h * 20 + (n & 3)) if (n >> 2) == g else (768 + (v0 >> 1))")
    X(173, "((8 + h) * 64 + n * 4 + h * 17) if n < 4 else v173")
    X(173, "(h * 80 + n) if g < 2 else v173")
    X(SCB, f"{L_OP} + (((wp * 128 + 64 + v0) * 16) if wr == 0 else (v173 * 16 + 8))")
    A(f"v_mov_b32 {VNE}, {NEPSL}")
    X(EPM, f"{EPS} if n < 8 else 0")
    for i in range(4):
        A(f"v_mov_b32 v{EP + i}, s11")
        if i: A(f"v_mov_b32 v{EPM + i}, v{EPM}")
    X(172, "(16256 << ((n & 1) * 16)) if (n >> 2) == g else 0")
    X(SEL + 2, "v172 if (n & 2) == 0 else 0"); X(SEL + 3, "v172 if (n & 2) != 0 else 0")
    A(f"v_mov_b32 v{SEL + 4}, v{SEL + 2}\nv_mov_b32 v{SEL + 5}, v{SEL + 3}")
    for i in (0, 1, 6, 7): A(f"v_mov_b32 v{SEL + i}, 0")
    X(172, f"{0x3F803F80} if n < 4 else 0"); X(173, f"{0x3F803F80} if (n >> 2) == 1 else 0")
    for gm in range(2):
        for i in range(20):
            A(f"v_mov_b32 v{MSK + 20 * gm + i}, {'v172' if 12 <= i < 16 else 'v173' if i >= 16 else 0}")
    X(172, f"v{L16} + {WAVE} * 3072 + {L_OP}")
    for i in range(3): A(f"ds_write_b128 v172, {v(MSK, 4)} offset:{1024 * i}")
    A("s_waitcnt lgkmcnt(0)")
    A(f"""s_mul_i32 s63, s69, {L_RED[1] - L_RED[0]}
    s_mul_i32 s64, s69, {L_RED[3] - L_RED[2]}
    s_add_u32 s63, s63, {L_RED[0]}
    s_add_u32 s64, s64, {L_RED[2]}
    s_cmp_eq_u32 s68, 0
    s_cselect_b32 s65, s63, s64
    s_cselect_b32 s64, s64, s63
    v_add_u32 v172, s64, v{L16}
    v_add_u32 v173, s65, v{L16}
    s_setprio {C.o.get("prio", 2)}""")
    C.stamp(R, 2, "rdy")

    def reads(st):
        c, ks = st >> 1, st & 1
        hi, off, f = ((c & 3) >> 1) * 2, (c & 1) * SLOT, FR + 36 * (st & 1)
        r = [f"ds_read_b128 {v(f + 4 * rt, 4)}, v{XA + hi + ks} offset:{off + 2048 * rt}" for rt in range(4)]
        for ct in range(5):
            for hh in range(2):
                a, o = (WM, (0, 40, 10256, 10296)[ct]) if ct < 4 else (WT, 0)
                r.append(f"ds_read_b64_tr_b16 {v(f + 16 + 4 * ct + 2 * hh, 2)}, v{a + hi + hh} offset:{off + 5120 * ks + o}")
        return r

    def mfmas(st):
        f, m = FR + 36 * (st & 1), []
        for ct in (0, 1, 4, 2, 3):
            for rt in range(4):
                d = v(ACC + 20 * rt + 4 * ct, 4)
                c = d if st else (v(EP, 4) if ct < 2 else v(EPM, 4) if ct == 4 else "0")
                m.append(f"{MF} {d}, {v(f + 4 * rt, 4)}, {v(f + 16 + 4 * ct, 4)}, {c}")
        return m

    A("s_barrier")
    C.stamp(R, 3, "B0")
    for r in reads(0): A(r)
    A("s_waitcnt lgkmcnt(0)")
    for c in range(10):
        m = mfmas(2 * c)
        if C.o.get("xnomm"):
            if c < 9: A("s_barrier")
            if c == 4: C.stamp(R, 4, "B5")
            if c == 7: C.h0_load(VZ, VH0)
            continue
        interleave(A, m[:-1], reads(2 * c + 1), per=2)
        A("s_waitcnt lgkmcnt(0)" + ("\ns_barrier" if c < 9 else ""))
        A(m[-1])
        if c == 4: C.stamp(R, 4, "B5")
        if c == 7: C.h0_load(VZ, VH0)
        m = mfmas(2 * c + 1)
        interleave(A, m[:-1], reads(2 * c + 2) if c < 9 else [], per=2)
        A("s_waitcnt lgkmcnt(0)")
        A(m[-1])
    C.stamp(R, 5, "kvend")
    acc = lambda rt, ct: ACC + 20 * rt + 4 * ct
    tmp = list(range(156, 164))
    C.phi([acc(rt, ct) + i for ct in (0, 1) for rt in range(4) for i in range(4)], tmp, VNE)
    A("s_mov_b32 exec_lo, 0x00ff00ff\ns_mov_b32 exec_hi, 0x00ff00ff")
    C.phi([acc(rt, 4) + i for rt in range(4) for i in range(4)], tmp, VNE)
    A("s_mov_b64 exec, -1")
    PK, T = FR, FR + 40
    for gm in range(2):
        for ct in (4, 0, 1, 2, 3):
            for j in range(4):
                s0 = acc(2 * gm + (j >> 1), ct) + 2 * (j & 1)
                C.cvt(PK + 20 * gm + 4 * ct + j, s0, s0 + 1)
        for k, (ctl, bm) in enumerate((("quad_perm:[0,1,2,3]", 1), ("quad_perm:[0,1,2,3]", 2), ("row_ror:8", 12),
                                       ("quad_perm:[0,1,2,3]", 4), ("quad_perm:[0,1,2,3]", 8))):
            for j in range(4):
                A(f"v_mov_b32_dpp v{MSK + 20 * gm + 4 * k + j}, v{PK + 20 * gm + 16 + j} {ctl} row_mask:0xf bank_mask:{hex(bm)}")
        p = lambda ct: v(PK + 20 * gm + 4 * ct, 4)
        q = lambda k: v(MSK + 20 * gm + 4 * k, 4)
        seen = set()
        for t, a_, b_ in ((0, p(0), p(2)), (1, p(1), p(3)), (2, p(0), q(3)), (3, q(0), p(2)), (2, p(1), q(4)),
                          (3, q(1), p(3)), (3, q(2), q(3)), (3, q(2), q(4))):
            d = v(T + 4 * t, 4)
            A(f"{MF} {d}, {a_}, {b_}, {d if gm or t in seen else 0}")
            seen.add(t)
    A(f"s_cmp_eq_u32 s68, 0\ns_cbranch_scc1 L_kv_nosw")
    for i in range(8): A(f"v_swap_b32 v{T + i}, v{T + 8 + i}")
    A("L_kv_nosw:")
    A(f"ds_write_b128 v172, {v(T + 8, 4)}\nds_write_b128 v172, {v(T + 12, 4)} offset:1024\ns_waitcnt vmcnt(0)")
    C.h0_check(VZ, VH0)
    A("s_waitcnt lgkmcnt(0)\ns_barrier")
    C.stamp(R, 6, "R")
    A(f"ds_read_b128 {v(T + 8, 4)}, v173\nds_read_b128 {v(T + 12, 4)}, v173 offset:1024")
    A(f"""s_lshl_b32 s67, {QUAD}, 2
    s_add_u32 s67, s67, {WAVE}
    s_lshl_b32 s67, s67, 14
    s_add_u32 s67, s67, {WS_KV}
    s_lshl_b32 s64, {RB}, 10
    s_add_u32 s64, s64, s67
    s_waitcnt lgkmcnt(0)""")
    for i in range(8): A(f"v_add_f32 v{T + i}, v{T + i}, v{T + 8 + i}")
    for i in range(4): C.cvt(T + 8 + i, T + 2 * i, T + 2 * i + 1)
    A(f"s_bitcmp0_b32 {RB}, 0\ns_cbranch_scc1 L_kv_even\nv_swap_b32 v{T + 8}, v{T + 10}\nv_swap_b32 v{T + 9}, v{T + 11}\nL_kv_even:")
    A(f"buffer_store_dwordx4 {v(T + 8, 4)}, v{L16}, {SWS}, s64 offen sc1")
    for g in range(2): C.wo_group(OA, 4 * g, L_WOA)
    A("s_waitcnt vmcnt(10)")
    C.set_flag(VZ, VONE)
    C.stamp(R, 7, "pub1")
    C.poll(f"v{PF1}", VD, 16, sleep=C.o.get("sl1", 2))
    C.stamp(R, 8, "F1")
    G = ACC
    for r in range(16):
        if r % 4 == 0 and r: A("s_add_u32 s67, s67, 4096")
        A(f"buffer_load_dwordx4 {v(G + 4 * r, 4)}, v{L16}, {SWS}, s67 offen offset:{1024 * (r % 4)} sc1")
    A(f"s_waitcnt vmcnt(15)\n{MF} {v(T, 4)}, {v(SEL + 4, 4)}, {v(G, 4)}, 0")
    for i in range(15):
        d = v(T + (0 if i & 1 else 4), 4)
        A(f"s_waitcnt vmcnt({14 - i})\n{MF} {d}, {v(SEL + 2, 4)}, {v(G + 2 + 4 * i, 4)}, {d if i else 0}")
    A(f"{MF} {v(T, 4)}, {v(SEL, 4)}, {v(G + 60, 4)}, {v(T, 4)}")
    for i in (2, 3, 0, 1): C.cvt(T + 8 + i, T + 2 * i, T + 2 * i + 1)
    A(f"ds_write_b64 v{SCB}, {v(T + 10, 2)}\nds_write_b64 v{SCA}, {v(T + 8, 2)}\ns_waitcnt lgkmcnt(0)\ns_barrier")
    C.stamp(R, 9, "S")
    ws = C.o.get("ws", 1)
    for g in range(2, 2 + ws): C.wo_group(OA, 4 * g, L_WOA)
    A("s_setprio 0\ns_barrier")
    for g in range(2 + ws, 5): C.wo_group(OA, 4 * g, L_WOA)
    A(f"s_mov_b32 s3, 1\ns_mov_b32 {LID}, {L_WOA}\ns_branch L_outproj")


def loader(C):
    A, R = C.A, "ld"
    VZ = "v1"
    XD, WD, XR = 2, 6, 11
    FW, ACC, XF = 16, 56, 96
    X = LaneExpr(A, [f"v{i}" for i in range(20, 36)])
    A(f"L_loader:\ns_sub_u32 s68, {WAVE}, 4\nv_mov_b32 {VZ}, 0")
    X.env.update(w="s68")
    A(f"s_lshl_b32 s63, {RB}, 2\ns_add_u32 s63, s63, s68\ns_mul_i32 s63, s63, {32 * 1280}")
    X(16, "(v0 >> 3) * 1280 + s63")
    for t in range(2):
        X(XD + t, f"v16 + {8 * t * 1280} + (((v0 & 7) ^ ({4 * t} + (v0 >> 4))) * 16)")
        X(XD + 2 + t, f"v{XD + t} + {16 * 1280}")
    A("s_and_b32 s63, s68, 1\ns_lshl_b32 s63, s63, 5")
    for t in range(5):
        X(16, f"((v0 + {64 * t}) * 6554) >> 16")
        X(WD + t, f"((v16 ^ ((v16 >> 1) & 4)) + s63) * 3840 + ((v0 + {64 * t} - v16 * 10) * 16)")
    A(f"""s_lshr_b32 s69, s68, 1
    s_mul_i32 s3, {QUAD}, 160
    s_mul_i32 s66, s69, 1280
    s_add_u32 s66, s66, s3
    s_add_u32 s66, s66, 1280
    s_lshl_b32 s64, s68, 12
    s_mul_i32 s65, s69, 10256
    s_and_b32 s63, s68, 1
    s_mul_i32 s63, s63, 5120
    s_add_u32 s65, s65, s63
    s_mul_i32 s67, s69, {64 * 3840}
    s_add_u32 s3, s3, s67
    s_mul_i32 s67, s69, 10240
    s_add_u32 s67, s67, s63""")
    C.srds()

    def chunk(c):
        sl = (c & 3) * SLOT
        if C.o.get("xnodma") and c > 1: return
        A(f"s_mov_b32 s63, {128 * c}")
        for t in range(4): C.dma(v(XD + t), SX, "s63", "s64", sl + 1024 * t)
        for t in range(5): C.dma(v(WD + t), SW, "s66", "s65", sl + 16384 + 1024 * t)
        A(f"s_add_u32 s66, s66, {64 * 3840}")

    def wq(p):
        if p == 3:
            A(f"s_mul_i32 s63, s69, {2 * SLOT + 7 * 10240}\ns_sub_u32 s63, s67, s63")
            base, add = "s63", 2 * SLOT + 6 * 10240
        else:
            base, add = "s67", (2 * SLOT + 2 * p * 10240 if p < 3 else 10240)
        for t in range(5): C.dma(v(WD + t), SW, "s3", base, add + 1024 * t)
        A(f"s_add_u32 s3, s3, {128 * 3840}")

    LA = C.o.get('la', 1)
    for c in range(LA + 1): chunk(c)
    C.stamp(R, 1, "iss")
    X(16, "v0 & 15", "n"); X(17, "v0 >> 4", "g")
    for ks in range(2):
        X(XR + ks, f"(w * 32 + n) * 128 + ((({4 * ks} + g) ^ (n >> 1)) * 16)")
        X(XR + 2 + ks, f"v{XR + ks} + {2 * SLOT}")
    for hh in range(2):
        X(18, f"(g * 8 + (({hh} ^ (g & 1)) * 4) + (n >> 2)) * 160 + {2 * SLOT}")
        X(ACC + hh, "v18 + (n & 3) * 8")
        X(ACC + 2 + hh, "v18 + 32 + (n & 3) * 40")
    items = [("c", c, max(0, c - 3)) for c in range(10)] + [("q", p, (7, 8, 8, 9, 9)[p]) for p in range(5)]
    cnt = lambda it: 9 if it[0] == "c" else 5
    nxt = LA + 1
    grow = C.o.get('grow', 10)
    for c in range(10):
        A(f"s_waitcnt vmcnt({sum(cnt(it) for it in items[c + 1:nxt])}) lgkmcnt(0)\ns_barrier")
        if c == 0: C.stamp(R, 2, "B0")
        for ks in range(2):
            for rt in range(2):
                A(f"ds_read_b128 {v(XF + 16 * c + 8 * ks + 4 * rt, 4)}, v{XR + ((c & 3) >> 1) * 2 + ks} offset:{(c & 1) * SLOT + 2048 * rt}")
        budget = 18 if c >= grow else 9
        while nxt < 15 and items[nxt][2] <= c and (budget > 0 or c == 9):
            (chunk if items[nxt][0] == "c" else wq)(items[nxt][1])
            budget -= cnt(items[nxt]); nxt += 1
    QA, EP, VNE = 2, 12, "v11"
    A("s_waitcnt vmcnt(0) lgkmcnt(0)")
    C.stamp(R, 3, "Wq")
    for i in range(4): A(f"v_mov_b32 v{QA + i}, v{ACC + i}\nv_mov_b32 v{EP + i}, s11")
    A(f"v_mov_b32 {VNE}, {NEPSL}\ns_barrier")
    C.stamp(R, 4, "R")

    def reads(st):
        c, ks, f, r = st >> 1, st & 1, FW + 20 * (st & 1), []
        off = 5120 * ks + 10240 * (c if c < 4 else c - 4 if c < 7 else c - 7)
        pre = ""
        if st in (8, 14):
            add = 40960 if st == 8 else -(40960 + 2 * SLOT)
            pre = "".join(f"v_add_u32 v{QA + i}, {add}, v{QA + i}\n" for i in range(4))
        for ct in range(5):
            for hh in range(2):
                a_, o = (QA, 40 * ct) if ct < 4 else (QA + 2, 0)
                r.append(pre + f"ds_read_b64_tr_b16 {v(f + 4 * ct + 2 * hh, 2)}, v{a_ + hh} offset:{off + o}")
                pre = ""
        return r

    for r in reads(0): A(r)
    for st in range(20):
        f, nx = FW + 20 * (st & 1), reads(st + 1) if st < 19 else []
        for ct in range(5):
            A(f"s_waitcnt lgkmcnt({8 if nx else 8 - 2 * ct})")
            for rt in range(2):
                d = v(ACC + 20 * rt + 4 * ct, 4)
                A(f"{MF} {d}, {v(f + 4 * ct, 4)}, {v(XF + 8 * st + 4 * rt, 4)}, {d if st else v(EP, 4)}")
                if nx: A(nx[2 * ct + rt])
    C.stamp(R, 5, "qend")
    C.phi([ACC + 20 * rt + 4 * ct + i for ct in range(5) for rt in range(2) for i in range(4)], list(range(16, 24)), VNE)
    BQ, AO, O = 96, 128, 176
    for rt in range(2):
        for h in range(4):
            b = BQ + 16 * rt + 4 * h
            for j in range(2):
                C.cvt(b + j, ACC + 20 * rt + 4 * h + 2 * j, ACC + 20 * rt + 4 * h + 2 * j + 1)
                C.cvt(b + 2 + j, ACC + 20 * rt + 16 + 2 * j, ACC + 20 * rt + 16 + 2 * j + 1)
    A(f"""v_lshlrev_b32 v2, 4, v0
    v_add_u32 v3, {L_OP}, v2
    v_lshlrev_b32 v4, 3, v0
    v_mov_b32 v5, 1
    s_lshl_b32 s64, {RB}, 2
    s_add_u32 s64, s64, s68
    s_mul_i32 {FLAGO}, s64, {FS // 4}
    s_add_u32 {FLAGO}, {FLAGO}, {QUAD}
    s_lshl_b32 {FLAGO}, {FLAGO}, 2
    s_add_u32 {FLAGO}, {FLAGO}, {FL2}
    s_mul_i32 s64, s64, 40960
    s_add_u32 s64, s64, {WS_O}
    s_lshl_b32 s65, {QUAD}, 9
    s_add_u32 s65, s65, s64
    s_add_u32 s65, s65, 16384
    s_lshl_b32 s63, {QUAD}, 11
    s_add_u32 s64, s64, s63""")
    C.stamp(R, 6, "phiq")
    A("s_barrier\ns_setprio 3")
    C.stamp(R, 7, "S")
    order = [8, 9, 10, 11, 0, 1, 2, 3, 4, 5, 6, 7]
    for k in order: A(f"ds_read_b128 {v(AO + 4 * k, 4)}, v3 offset:{1024 * k}")
    for rt in range(2):
        o = O + 24 * rt
        for i, k in enumerate(order):
            h = k & 3
            if rt == 0: A(f"s_waitcnt lgkmcnt({11 - i})")
            d = v(o + (4 * h if k < 4 else 16 if k < 8 else 20), 4)
            c = "0" if k <= 4 else v(EP, 4) if k == 8 else d
            A(f"{MF} {d}, {v(AO + 4 * k, 4)}, {v(BQ + 16 * rt + 4 * h, 4)}, {c}")
    for rt in range(2):
        o, p = O + 24 * rt, 16 + 12 * rt
        for h in range(4): A(f"v_rcp_f32 v{o + 20 + h}, v{o + 20 + h}")
        for h in range(4):
            for i in range(4): A(f"v_mul_f32 v{o + 4 * h + i}, v{o + 4 * h + i}, v{o + 20 + h}")
        for h in range(1, 4):
            A(f"v_mov_b32_dpp v{o + 20}, v{o + 20 + h} quad_perm:[0,1,2,3] row_mask:{hex(1 << h)} bank_mask:0xf")
        for j in range(8): C.cvt(p + j, o + 2 * j, o + 2 * j + 1)
        for i in range(4): A(f"v_mul_f32 v{o + 16 + i}, v{o + 16 + i}, v{o + 20}")
        A(f"buffer_store_dwordx4 {v(p, 4)}, v2, {SWS}, s64 offen sc1\nbuffer_store_dwordx4 {v(p + 4, 4)}, v2, {SWS}, s64 offen offset:1024 sc1")
        for j in range(2): C.cvt(p + 8 + j, o + 16 + 2 * j, o + 17 + 2 * j)
        A(f"buffer_store_dwordx2 {v(p + 8, 2)}, v4, {SWS}, s65 offen sc1")
        if rt == 0: A("s_add_u32 s64, s64, 20480\ns_add_u32 s65, s65, 20480")
    C.stamp(R, 8, "ost")
    A("s_barrier\ns_waitcnt vmcnt(0)")
    C.set_flag(VZ, "v5")
    C.stamp(R, 9, "pub2")
    C.finish()
```

```python
from asmlib import *

SX, SW, SO, SWS, SDBG, SOUT = "s[32:35]", "s[36:39]", "s[40:43]", "s[44:47]", "s[48:51]", "s[52:55]"
WAVE, XCD, IDX, LID, FLAGO, RB, QUAD = "s56", "s57", "s58", "s59", "s60", "s61", "s62"
WS_FLAG, WS_KV, WS_O, WS_B, WS_G, WS_STAMP = 0, 0x100000, 0x200000, 0x500000, 0x800000, 0x8000000
SLOT = 36880
L_WO = 2 * SLOT - 30720
L_WOA = 2 * SLOT - 40960
L_RED = (34816, 30720, 145440, 160320)
L_OP = 4 * SLOT
L_DUMP = L_OP + 12288
LDS_BYTES = 163840
USTR = 4672
L_T = L_WO + 102400
TSTR = 1824
MF = "v_mfma_f32_16x16x32_bf16"
EPS = 0x358637BD
LOG2E = 0x3FB8AA3B
NEPSL = 0xB5C1A2A0
SPIN = 200000
import os
FS = int(os.environ.get("FS", 4352))
FL1 = 0x900000
FL2, FLB, FLG = FL1 + 32 * FS, FL1 + 96 * FS, FL1 + 160 * FS


class Ctx:
    def __init__(self, opts):
        self.A = Asm()
        self.o = opts
        self.dbg = opts.get("stamps", False)
        self.names = {}
        self.tick = "s_memtime" if self.dbg == 2 else "s_memrealtime"

    def stamp(self, role, slot, name):
        if self.dbg:
            self.names.setdefault(role, {})[slot] = name
            self.A(f"{self.tick} {s(70 + 2 * slot, 2)}")

    def finish(self):
        A = self.A
        if self.dbg:
            A("s_branch L_dump")
        else:
            A("s_endpgm")

    def dump(self):
        A = self.A
        if not self.dbg:
            return
        A(f"L_dump:\ns_waitcnt vmcnt(0)\n{self.tick} s[100:101]\ns_waitcnt lgkmcnt(0)\ns_mov_b64 exec, -1")
        A(f"s_lshl_b32 s63, s2, 3\ns_add_u32 s63, s63, {WAVE}\ns_lshl_b32 s63, s63, 6\ns_add_u32 s63, s63, {WS_STAMP}\nv_mov_b32 v1, 0")
        for i in range(16):
            A(f"v_mov_b32 v{4 + i}, s{70 + 2 * i}")
        A("s_mov_b64 exec, 1")
        for i in range(4):
            A(f"buffer_store_dwordx4 {v(4 + 4 * i, 4)}, v1, {SWS}, s63 offen offset:{16 * i}")
        A("s_waitcnt vmcnt(0)\ns_endpgm")

    def srds(self):
        A = self.A
        A("s_waitcnt lgkmcnt(0)")
        for base, ptr in ((32, 4), (36, 6), (44, 30), (40, 8), (48, 28), (52, 26)):
            A(f"s_mov_b64 {s(base, 2)}, {s(ptr, 2)}")

    def plan(self, role):
        txt = self.o.get("pf" + role, {"kv": "", "cv": "k18", "sp": "k98,k146+q0,q14+c0,c12,o0,o48,o96"}[role])
        return [[(p[0], int(p[1:])) for p in t.split("+")] for t in str(txt).split(",") if len(t) > 1]

    def pf_unit(self, su, chain, n, vx, vw, vlin, vd):
        A, used = self.A, 0
        end = A.label("pe")
        for kind, first in chain:
            cnt = {"k": 180, "q": 50, "o": 100, "c": 64}[kind] - first
            nx = A.label("pn")
            if used + cnt < n: A(f"s_cmp_ge_u32 {su}, {used + cnt}\ns_cbranch_scc1 {nx}")
            A(f"s_add_i32 s63, {su}, {first - used}")
            self.pf_one(kind, vx, vw, vlin, vd)
            if used + cnt >= n: break
            A(f"s_branch {end}\n{nx}:")
            used += cnt
        else:
            A(f"s_mov_b64 exec, 1\nbuffer_load_dword {vd}, {vx}, {SX}, 0 offen\ns_mov_b64 exec, -1")
        A(f"{end}:")

    def pf_one(self, kind, vx, vw, vlin, vd):
        if kind == "k": self.pf_kv("s63", vx, vw, vd)
        elif kind == "q": self.pf_wq("s63", vw, vd)
        elif kind == "o": self.pf_wo("s63", vlin, vd)
        else:
            self.A(f"""s_lshr_b32 s64, {XCD}, 2
            s_add_u32 s64, s64, 8
            s_cmp_ge_u32 s63, 32
            s_cselect_b32 s64, {XCD}, s64
            s_lshl_b32 s64, s64, 7
            s_and_b32 s63, s63, 31
            s_mul_i32 s63, s63, {64 * 1280}
            s_add_u32 s64, s64, s63
            buffer_load_dword {vd}, {vx}, {SX}, s64 offen""")

    def set_flag(self, vz, vone):
        self.A(f"s_mov_b64 exec, 1\nbuffer_store_dword {vone}, {vz}, {SWS}, {FLAGO} offen sc1\ns_mov_b64 exec, -1")

    def h0_load(self, vz, vt):
        A, l = self.A, self.A.label("h0s")
        A(f"s_cmp_lg_u32 {WAVE}, 0\ns_cbranch_scc1 {l}\ns_mov_b64 exec, 1\nbuffer_load_dword {vt}, {vz}, {SDBG}, 0 offen sc1\ns_mov_b64 exec, -1\n{l}:")

    def h0_check(self, vz, vt):
        A = self.A
        l, d = A.label("h0l"), A.label("h0d")
        A(f"""s_cmp_lg_u32 {WAVE}, 0
        s_cbranch_scc1 {d}
        s_mov_b32 s63, 0
        {l}:
        v_readfirstlane_b32 s64, {vt}
        s_add_u32 s63, s63, 1
        s_cmp_eq_u32 s64, 1
        s_cbranch_scc1 {d}
        s_cmp_ge_u32 s63, {SPIN}
        s_cbranch_scc1 {d}
        s_sleep 4""")
        self.h0_load(vz, vt)
        A(f"s_waitcnt vmcnt(0)\ns_branch {l}\n{d}:")

    def poll(self, va, vt, nl, need=None, sleep=2):
        A = self.A
        l, d = A.label("pl"), A.label("pd")
        A(f"""s_mov_b32 s63, 0
        s_mov_b64 exec, {hex((1 << nl) - 1)}
        {l}:
        buffer_load_dword {vt}, {va}, {SWS}, 0 offen sc1
        s_add_u32 s63, s63, 1
        s_waitcnt vmcnt(0)
        v_cmp_ne_u32 vcc, 1, {vt}""")
        A(f"s_cbranch_vccz {d}" if need is None else f"s_and_b32 s65, vcc_lo, {need}\ns_cbranch_scc0 {d}")
        A(f"""s_cmp_ge_u32 s63, {SPIN}
        s_cbranch_scc1 {d}
        s_sleep {sleep}
        s_branch {l}
        {d}:
        s_mov_b64 exec, -1""")

    def dma(self, va, srd, soff, m0base, m0add):
        self.A(f"s_add_u32 m0, {m0base}, {m0add}\nbuffer_load_dwordx4 {va}, {srd}, {soff} offen lds")

    def wo_addr(self, X, base):
        for t in range(5):
            X(base + t, f"((((v0 + {64 * t}) * 6554) >> 16) * 1120) + (v0 + {64 * t}) * 16")

    def wo_group(self, base, gadd, lds=L_WO):
        for x in self.wo_list(base, gadd, lds): self.A(x)

    def wo_list(self, base, gadd, lds=L_WO):
        pre = (f"""s_add_u32 s64, {WAVE}, {gadd}
        s_mul_i32 s65, s64, 5120
        s_mul_i32 s64, s64, 40960
        s_lshr_b32 s66, {IDX}, 2
        s_mul_i32 s66, s66, 160
        s_add_u32 s64, s64, s66
        """)
        return [(pre if t == 0 else "") + f"s_add_u32 m0, s65, {lds + 1024 * t}\nbuffer_load_dwordx4 {v(base + t)}, {SO}, s64 offen lds" for t in range(5)]

    def pf_kv(self, su, vx, vw, vd):
        A = self.A
        lw, le = A.label("pfw"), A.label("pfe")
        A(f"""s_mul_i32 s64, {su}, 3641
        s_lshr_b32 s64, s64, 16
        s_mul_i32 s65, s64, 18
        s_sub_u32 s65, {su}, s65
        s_cmp_ge_u32 s65, 8
        s_cbranch_scc1 {lw}
        s_lshr_b32 s66, {XCD}, 1
        s_lshl_b32 s66, s66, 3
        s_add_u32 s65, s65, s66
        s_mul_i32 s65, s65, {64 * 1280}
        s_lshl_b32 s64, s64, 7
        s_add_u32 s64, s64, s65
        buffer_load_dword {vd}, {vx}, {SX}, s64 offen
        s_branch {le}
        {lw}:
        s_mul_i32 s64, s64, {64 * 3840}
        s_cmp_ge_u32 s65, 13
        s_cselect_b32 s66, 7, 2
        s_add_u32 s65, s65, s66
        s_and_b32 s66, {XCD}, 1
        s_mul_i32 s66, s66, 5
        s_add_u32 s65, s65, s66
        s_lshl_b32 s65, s65, 7
        s_add_u32 s64, s64, s65
        buffer_load_dword {vd}, {vw}, {SW}, s64 offen
        {le}:""")

    def pf_wq(self, su, vw, vd):
        self.A(f"""s_mul_i32 s64, {su}, 13108
        s_lshr_b32 s64, s64, 16
        s_mul_i32 s65, s64, 5
        s_sub_u32 s65, {su}, s65
        s_mul_i32 s64, s64, {64 * 3840}
        s_and_b32 s66, {XCD}, 1
        s_mul_i32 s66, s66, 5
        s_add_u32 s65, s65, s66
        s_lshl_b32 s65, s65, 7
        s_add_u32 s64, s64, s65
        buffer_load_dword {vd}, {vw}, {SW}, s64 offen""")

    def pf_wo(self, su, vlin, vd):
        self.A(f"s_lshl_b32 s64, {su}, 13\nbuffer_load_dword {vd}, {vlin}, {SO}, s64 offen")

    def phi(self, regs, tmp, vne):
        A = self.A
        n = len(tmp)
        for i in range(0, len(regs), n):
            g = list(zip(regs[i:i + n], tmp))
            for r, t in g: A(f"v_fma_f32 v{t}, v{r}, s10, {vne}")
            for r, t in g: A(f"v_exp_f32_e64 v{t}, v{t} clamp\nv_max_f32 v{r}, s11, v{r}")
            for r, t in g: A(f"v_add_f32 v{r}, v{r}, v{t}")

    def cvt(self, d, a, b):
        self.A(f"v_cvt_pk_bf16_f32 v{d}, v{a}, v{b}")


def interleave(A, main, fill, per=1, start=0):
    fill = list(fill)
    for i, m in enumerate(main):
        A(m)
        if i >= start:
            for _ in range(per):
                if fill: A(fill.pop(0))
    for f in fill: A(f)
```

```python
from k_common import *

L_RAW = L_WO
L_SCR = L_WO + 32768
T_C2, T_C3 = 1184, 1568
BANDS = ((3, 5, 31), (6, 10, 31), (11, 13, 31), (14, 18, 39), (5, 11, 31), (12, 20, 39), (3, 4, 31))


def conv(C):
    A, R = C.A, "cv"
    VZ, VONE, VH0 = "v1", "v2", "v3"
    X = LaneExpr(A, [f"v{i}" for i in range(236, 256)])
    A(f"""L_conv:
    s_sub_u32 s63, {IDX}, 16
    s_lshl_b32 s64, {XCD}, 3
    s_lshl_b32 s65, {XCD}, 1
    s_add_u32 s65, s65, 56
    s_cmp_lt_u32 s63, 8
    s_cselect_b32 {RB}, s64, s65
    s_add_u32 {RB}, {RB}, s63
    s_lshl_b32 s68, {RB}, 3
    s_add_u32 s68, s68, {WAVE}
    v_mov_b32 {VZ}, 0
    v_mov_b32 {VONE}, 1""")
    X(4, "v0 * 4 + s68 * 256"); X(5, "s68 * 2")
    X(16, "v0 * 1280"); X(17, "v0 * 3840")
    C.srds()
    A("""global_load_dword v10, v4, s[12:13]
    global_load_dword v11, v4, s[14:15]
    global_load_ushort v14, v5, s[20:21]
    global_load_dword v12, v4, s[16:17]
    global_load_dword v13, v4, s[18:19]
    global_load_ushort v15, v5, s[22:23]""")
    pf = C.plan("cv")
    A(f"s_mul_i32 s67, {WAVE}, 10\ns_add_u32 s67, s67, {IDX}\ns_sub_u32 s67, s67, 16")
    early = C.o.get("cvearly", 0)
    if early:
        for u in pf: C.pf_unit("s67", u, 80, "v16", "v17", None, "v19")
    C.stamp(R, 1, "iss")
    X(7, "v0 & 15", "n"); X(8, "v0 >> 4", "g")
    SW_, SR_, GV, UB = 4, 5, 6, 9
    X(GV, f"v16 + {WAVE} * {256 * 1280} + {RB} * 16")
    X(SW_, f"v0 * 8 + {WAVE} * 8704 + {L_SCR}")
    X(SR_, f"n * 544 + g * 16 + {WAVE} * 8704 + {L_SCR}")
    A(f"s_mul_i32 s69, {WAVE}, {TSTR}\ns_add_u32 s69, s69, {L_T}\ns_mul_i32 s3, {WAVE}, {USTR}")
    X(UB, "n * 32 + g * 16 + s3 + 32")
    for i in range(4): A(f"v_mov_b32 v{28 + i}, 0")
    X(26, "v0 * 8 + s3"); X(27, "v0 * 16 + s69")
    A(f"ds_write_b64 v26, v[28:29]\nds_write_b128 v27, v[28:31]\nds_write_b128 v27, v[28:31] offset:{TSTR - 1024}")
    OA = 20
    C.wo_addr(X, OA)
    AD, SL, A2, A3, T0, T1, T2, TX = 25, 26, 27, 28, 29, 30, 31, 32
    X(233, "15 + n - g * 8", "lm")
    X(SL, f"{0x03020504} if (lm & 1) == 1 else {0x01000302}")
    X(AD, "((lm >> 1) - 3) * 4 + s69 + 32")
    X(A2, f"(n - g * 4 - 3) * 8 + s69 + {T_C2}")
    X(A3, f"(n - g * 4 - 3) * 4 + s69 + {T_C3}")
    X(T0, "((g >> 1) * 128 + n * 8 + (g & 1) * 4) * 2 + s69 + 32")
    X(T1, f"((g * 256 + n * 16 + {32 + 2 * 258}) if g < 2 else (g * 128 + n * 4 + {T_C2 - 256})) + s69")
    X(T2, f"g * 128 + n * 2 + s69 + {T_C3}")
    X(TX, "s69")
    BND = 36
    X(232, "15 - n + g * 8")
    A("v_min_u32 v232, 31, v232\ns_mov_b32 s64, 0x3f80")
    for bi, (lo, hi, q) in enumerate(BANDS):
        cst = sum(1 << (q - d) for d in range(lo, hi + 1))
        A(f"""s_mov_b32 s63, {cst}
        v_lshrrev_b32_e64 v230, v232, s63
        v_and_b32 v231, 0xaa, v230
        v_and_b32 v230, 0x55, v230
        v_lshl_or_b32 v230, v231, 15, v230""")
        for j in range(4):
            d = BND + 4 * bi + j
            if j: A(f"v_lshrrev_b32 v{d}, {2 * j}, v230")
            A(f"v_and_b32 v{d}, 0x10001, v{d if j else 230}")
            if bi < 6: A(f"v_mul_u32_u24 v{d}, s64, v{d}")
    if not early:
        for u in pf: C.pf_unit("s67", u, 80, "v16", "v17", None, "v19")
    C.stamp(R, 2, "adr")

    gk = [0]

    def gather():
        t = gk[0]; gk[0] += 1
        if C.o.get("xnog"): return
        A(f"s_add_u32 s63, {IDX}, {t}\ns_and_b32 s63, s63, 3\ns_mul_i32 s64, s63, {64 * 1280}\ns_lshl_b32 s63, s63, 10\ns_add_u32 s63, s63, s66")
        C.dma(f"v{GV}", SX, "s64", "s63", L_RAW)

    A(f"s_waitcnt vmcnt({len(pf)})\ns_mov_b32 s10, {LOG2E}\ns_mov_b32 s11, 0x3e22f983\ns_lshl_b32 s66, {WAVE}, 12")
    C.stamp(R, 3, "par")
    A("""v_lshlrev_b32 v14, 16, v14
    v_mul_f32 v14, s10, v14
    v_lshlrev_b32 v70, 16, v10
    v_and_b32 v71, 0xffff0000, v10
    v_exp_f32 v14, v14
    v_mul_f32 v70, s10, v70
    v_mul_f32 v71, s10, v71
    v_exp_f32 v70, v70
    v_exp_f32 v71, v71
    v_cvt_pk_bf16_f32 v14, v14, v14
    v_lshlrev_b32 v72, 16, v11
    v_and_b32 v73, 0xffff0000, v11
    v_cvt_pk_bf16_f32 v10, v70, v71
    v_lshlrev_b32 v14, 16, v14
    v_lshlrev_b32 v70, 16, v10
    v_and_b32 v71, 0xffff0000, v10
    v_lshlrev_b32 v15, 16, v15""")
    for i in range(4): A(f"v_mul_f32 v{70 + i}, v{70 + i}, v14")
    for i in range(2): A(f"v_mul_f32 v{70 + i}, s10, v{70 + i}\nv_mul_f32 v{72 + i}, s11, v{72 + i}")
    E8, P, RA, RBb, W = 74, 78, 118, 122, 126
    RF, CF, D = 132, 164, 196

    def cexp(d, p, conj):
        fp = {1: "1.0", 8: "0x41000000", 128: "0x43000000"}[p]
        for i in range(2):
            A(f"v_mul_f32 v{230 + 2 * i}, {fp}, v{70 + i}\nv_mul_f32 v{231 + 2 * i}, {fp}, v{72 + i}")
        for i in range(2):
            A(f"v_exp_f32_e64 v{230 + 2 * i}, -v{230 + 2 * i}\nv_fract_f32 v{231 + 2 * i}, v{231 + 2 * i}")
        for i in range(2):
            A(f"v_cos_f32 v{d + 2 * i}, v{231 + 2 * i}\nv_sin_f32 v{d + 2 * i + 1}, v{231 + 2 * i}")
        for i in range(2):
            A(f"v_mul_f32 v{d + 2 * i}, v{d + 2 * i}, v{230 + 2 * i}")
            A(f"v_mul_f32_e64 v{d + 2 * i + 1}, {'-' if conj else ''}v{d + 2 * i + 1}, v{230 + 2 * i}")

    def cmul(d, a_, b_):
        for i in (0, 2): A(f"v_pk_mul_f32 {v(d + i, 2)}, {v(a_ + i, 2)}, {v(b_ + i, 2)} op_sel:[0,0] op_sel_hi:[0,1]")
        for i in (0, 2): A(f"v_pk_fma_f32 {v(d + i, 2)}, {v(a_ + i, 2)}, {v(b_ + i, 2)}, {v(d + i, 2)} op_sel:[1,1,0] op_sel_hi:[1,0,1] neg_lo:[0,1,0]")

    wk = [0]

    def put(row, z):
        w = W + 2 * (wk[0] % 3); wk[0] += 1
        C.cvt(w, z, z + 1); C.cvt(w + 1, z + 2, z + 3)
        A(f"ds_write_b64 v{SW_}, {v(w, 2)} offset:{544 * row}")

    def get(f):
        for st in range(8): A(f"ds_read_b128 {v(f + 4 * st, 4)}, v{SR_} offset:{64 * st}")

    def mm(d):
        A("s_waitcnt lgkmcnt(0)")
        for st in range(8): A(f"{MF} {v(d, 4)}, {v(CF + 4 * st, 4)}, {v(RF + 4 * st, 4)}, {v(d, 4) if st else 0}")

    cexp(E8, 8, False)
    A(f"""v_add_f32 v14, v14, v14
    v_lshlrev_b32 v{RA}, 16, v12
    v_lshlrev_b32 v{RA + 1}, 16, v13
    v_and_b32 v{RA + 2}, 0xffff0000, v12
    v_and_b32 v{RA + 3}, 0xffff0000, v13""")
    for i in range(4): A(f"v_mul_f32 v{RA + i}, v{RA + i}, v14")
    gp = C.o.get("gp", 0)
    cur, nxt = RA, RBb
    for j in range(16):
        if j < 15: cmul(nxt, cur, E8)
        put(j, cur)
        cur, nxt = nxt, cur
        if j == 7 and gp == 0: gather()
    get(RF)
    Pp = lambda t: P + 4 * t
    A(f"v_mov_b32 v{Pp(8)}, v{E8}\nv_sub_f32 v{Pp(8) + 1}, 0, v{E8 + 1}\nv_mov_b32 v{Pp(8) + 2}, v{E8 + 2}\nv_sub_f32 v{Pp(8) + 3}, 0, v{E8 + 3}")
    cexp(Pp(1), 1, True); cexp(E8, 128, True)
    gather()
    A(f"v_mov_b32 v{P}, 1.0\nv_mov_b32 v{P + 1}, 0\nv_mov_b32 v{P + 2}, 1.0\nv_mov_b32 v{P + 3}, 0")
    put(0, Pp(0)); put(1, Pp(1))
    for t in range(2, 8):
        cmul(Pp(t), Pp(t >> 1), Pp(t - (t >> 1)))
        put(t, Pp(t))
    put(8, E8)
    ch = {}
    free = [RA, RBb, Pp(0)]

    def step(t, src=None):
        src = src or ch.get(t, Pp(t))
        d = free.pop(0)
        cmul(d, src, E8)
        if src != E8: free.append(src)
        ch[t] = d
        return d

    for t in range(1, 8):
        put(8 + t, step(t))
        if t & 1: free.append(ch[t])
    get(CF)
    gather()
    step(8)
    seq = [2, 4, 6, 8, 2, 4, 6, 8] + [4, 8] * 4
    z = step(seq[0])
    mm(D)
    for row in range(16):
        zn = step(seq[row + 1]) if row < 15 else step(8)
        put(row, z); z = zn
        if row == 8: gather()
    get(CF)
    A(f"s_mov_b64 exec, 1\nv_add_f32 v{D}, v{D}, v15\ns_mov_b64 exec, -1")
    C.cvt(D, D, D + 1); C.cvt(D + 1, D + 2, D + 3)
    A(f"ds_write_b64 v{T0}, {v(D, 2)}")
    mm(D + 4)
    for row in range(9):
        zn = step(8) if row < 7 else step(0, E8) if row == 7 else None
        put(row, z); z = zn
    while gk[0] < 4: gather()
    get(CF)
    C.cvt(D, D + 4, D + 5); C.cvt(D + 1, D + 5, D + 5); C.cvt(D + 2, D + 6, D + 7); C.cvt(D + 3, D + 7, D + 7)
    A(f"""v_and_b32 v{D + 4}, 0xffff, v{D + 3}
    s_mov_b32 exec_hi, 0
    ds_write2_b32 v{T1}, v{D}, v{D + 1} offset1:1
    ds_write2_b32 v{T1}, v{D + 2}, v{D + 3} offset0:2 offset1:3
    s_mov_b32 exec_lo, 0x80000000
    ds_write_b32 v{T1}, v{D + 4} offset:16
    s_mov_b32 exec_lo, 0
    s_mov_b32 exec_hi, -1
    ds_write2_b32 v{T1}, v{D}, v{D + 2} offset1:16
    s_mov_b32 exec_lo, -1""")
    mm(D + 8)
    X(74, f"(g * 16 + (n & 2) * 4 + (n >> 2)) * 16 + (n & 1) * 8 + {WAVE} * 4096 + {L_RAW}")
    X(75, f"(n & 7) * {USTR} + (256 + {WAVE} * 256 + g * 16 + (n >> 3) * 8) * 2")
    C.cvt(D + 4, D + 8, D + 8); C.cvt(D + 8, D + 8, D + 9); C.cvt(D + 9, D + 10, D + 11)
    A("s_mov_b32 exec_hi, 0")
    for i in range(4):
        A(f"ds_write_b16{'_d16_hi' if i & 1 else ''} v{T2}, v{D + 8 + (i >> 1)} offset:{32 * i}")
    A(f"s_mov_b32 exec_lo, 0\ns_mov_b32 exec_hi, 1\nds_write_b32 v{TX}, v{D + 4} offset:{32 + 512}\ns_mov_b64 exec, -1")
    C.stamp(R, 4, "tab")
    ACC, RW, AF, BF, DF, BX = 64, 96, 108, 124, 188, 12
    TF = BND

    def areads(c, k):
        r = RW + 6 * k
        return [f"ds_read2_b32 {v(r, 2)}, v{AD} offset0:{16 * c} offset1:{16 * c + 1}" if c < 16 else f"ds_read2_b32 {v(r, 2)}, v33 offset1:1",
                f"ds_read2_b32 {v(r + 2, 2)}, v{AD} offset0:{16 * c + 2} offset1:{16 * c + 3}" if c < 16 else f"ds_read2_b32 {v(r + 2, 2)}, v33 offset0:2 offset1:3",
                f"ds_read_b32 v{r + 4}, v{AD} offset:{64 * c + 16}"]

    def aperm(d, k):
        r = RW + 6 * k
        return [f"v_perm_b32 v{d + t}, v{r + 4 - t}, v{r + 3 - t}, v{SL}" for t in range(4)]

    A(f"v_add_u32 v33, 1024, v{AD}\nds_read_u16 v34, v{TX} offset:{T_C2 + 254}")
    for x in areads(16, 0) + areads(0, 1): A(x)
    A("s_waitcnt vmcnt(0)")
    C.stamp(R, 5, "x")
    for t in range(4):
        for hh in range(2): A(f"ds_read_b64_tr_b16 {v(80 + 4 * t + 2 * hh, 2)}, v74 offset:{1024 * t + 64 * hh}")
    A("s_waitcnt lgkmcnt(8)")
    for x in aperm(252, 0) + aperm(AF, 1): A(x)
    for j in range(4): A(f"v_mul_u32_u24 v{BND + 24 + j}, v34, v{BND + 24 + j}")
    for x in areads(8, 0): A(x)
    for t in range(4): A(f"s_waitcnt lgkmcnt({9 - t})\nds_write_b128 v75, {v(80 + 4 * t, 4)} offset:{128 * t}")
    A("s_waitcnt lgkmcnt(0)")
    for x in aperm(AF + 4, 0): A(x)
    A("s_barrier")
    C.stamp(R, 6, "C1")

    bread = lambda r, e, o=0: f"ds_read_b128 {v(BF + 32 * (r & 1) + 4 * e, 4)}, v{UB} offset:{64 * (8 * e - r) + 448 + o}"
    acc = lambda g: v(ACC + 4 * g, 4)
    for e in range(8): A(bread(0, e))
    for e in range(6): A(bread(1, e, 48))
    wo = [x for g in range(2) for x in C.wo_list(OA, 8 * g)]
    B0 = lambda e: v(BF + 4 * e, 4)
    B1 = lambda e: v(BF + 32 + 4 * e, 4)
    for e in range(8):
        A(f"s_waitcnt lgkmcnt({13 - e})\n{MF} {acc(e)}, {v(AF, 4)}, {B0(e)}, 0")
    A("s_waitcnt lgkmcnt(0)")
    rest = [f"{MF} {acc(g)}, {v(fa, 4)}, {B0(g - a_)}, {acc(g)}" for a_, fa in ((1, AF + 4), (2, 252), (4, BND + 24)) for g in range(a_, 8)]
    band = lambda bi: v(BND + 4 * bi, 4)
    TMP = (RW, RW + 4, BX, BX + 4)
    for e in range(6):
        for t in range(4): A(f"{MF} {v(TMP[t], 4)}, {(B1 if t == 3 else B0)(e)}, {band(t)}, 0")
        cv = [f"v_cvt_pk_bf16_f32 v{DF + 8 * e + 2 * i + hh}, v{TMP[2 * hh] + i}, v{TMP[2 * hh + 1] + i}" for hh in range(2) for i in range(4)]
        if e < 4:
            for t in range(2): A(f"{MF} {v(AF + 8 + 4 * t, 4)}, {(B1 if t else B0)(e)}, {band(4 + t)}, 0")
            cv += [f"v_cvt_pk_bf16_f32 v{DF + 48 + 4 * e + i}, v{AF + 8 + i}, v{AF + 12 + i}" for i in range(4)]
        m = [rest.pop(0) for _ in range(3 if e < 5 else 2)]
        nb = [bread(1, e)] + ([bread(1, 6), bread(1, 7)] if e == 5 else [])
        interleave(A, m, cv + nb, per=4 if e < 4 else 3)
    for x in areads(1, 0) + areads(9, 1): A(x)
    far = [(2, dl, h) for dl in range(3) for h in range(2)] + [(3, dl, 0) for dl in range(4)]
    sched = {1: [0], 2: [1], 3: [2, 9], 4: [3], 5: [4, 8], 6: [5], 7: [6, 7]}

    def treads(r):
        l = []
        for k, fi in enumerate(sched.get(r, [])):
            cl, dl, h = far[fi]
            f = TF + 8 * (r & 1) + 4 * k
            if cl == 2:
                l += [f"ds_read_b64 {v(f + 2 * i, 2)}, v{A2} offset:{8 * (16 * dl + 3 - 2 * h - i)}" for i in range(2)]
            else:
                l += [f"ds_read2_b32 {v(f + 2 * i, 2)}, v{A3} offset0:{16 * dl + 3 - 2 * i} offset1:{16 * dl + 2 - 2 * i}" for i in range(2)]
        return l

    def tmm(r):
        l = []
        for k, fi in enumerate(sched[r]):
            cl, dl, h = far[fi]
            f = v(TF + 8 * (r & 1) + 4 * k, 4)
            g0 = dl + (2 if cl == 2 else 4)
            for g in range(g0, 8):
                d = DF + 8 * (g - g0) + 4 * h if cl == 2 else DF + 48 + 4 * (g - g0)
                l.append(f"{MF} {acc(g)}, {v(d, 4)}, {f}, {acc(g)}")
        return l

    for x in treads(1): A(x)
    A("s_waitcnt lgkmcnt(0)")
    for x in aperm(AF + 8, 0) + aperm(AF + 12, 1): A(x)
    for r in range(1, 8):
        af, b = AF + 8 * (r & 1), BF + 32 * (r & 1)
        m = [f"{MF} {acc(g)}, {v(af + 4 * a_, 4)}, {v(b + 4 * (g - a_), 4)}, {acc(g)}" for a_ in range(2) for g in range(a_, 8)]
        if r < 7:
            rd = areads(r + 1, 0) + areads(r + 9, 1) + treads(r + 1) + [bread(r + 1, e) for e in range(8)]
            interleave(A, m[:9], rd, per=2)
            interleave(A, m[9:], [wo.pop(0) for _ in range(2) if wo], per=1, start=1)
            A("s_waitcnt lgkmcnt(0)")
            nf = AF + 8 * ((r + 1) & 1)
            interleave(A, tmm(r), aperm(nf, 0) + aperm(nf + 4, 1), per=2)
        else:
            C.h0_load(VZ, VH0)
            for x in m + tmm(r): A(x)
        if r == 5:
            A(f"s_cmp_ge_u32 {WAVE}, 4\ns_cbranch_scc1 L_cv_nowo")
            C.wo_group(OA, 16)
            A("L_cv_nowo:")
    C.stamp(R, 7, "toep")
    X(4, "n * 32 + g * 8 + s3 + 512")
    X(5, f"(n >> 2) * {USTR} + (256 + {WAVE} * 256 + g * 16 + (n & 3) * 4) * 2")
    X(6, "v0 * 16")
    A(f"s_lshl_b32 s64, {RB}, 15\ns_lshl_b32 s65, {WAVE}, 12\ns_add_u32 s64, s64, s65\ns_add_u32 s64, s64, {WS_B}")
    for g in range(8):
        d = ACC + 4 * g
        C.cvt(d, d, d + 1); C.cvt(d + 1, d + 2, d + 3)
        A(f"ds_write_b64 v4, {v(d, 2)} offset:{512 * g}")
    A(f"""s_mul_i32 s65, {RB}, 6554
    s_lshr_b32 s65, s65, 16
    s_mul_i32 s65, s65, {8 * FS - 40}
    s_mul_i32 {FLAGO}, {WAVE}, {FS // 4}
    s_add_u32 {FLAGO}, {FLAGO}, {RB}
    s_lshl_b32 {FLAGO}, {FLAGO}, 2
    s_add_u32 {FLAGO}, {FLAGO}, s65
    s_add_u32 {FLAGO}, {FLAGO}, {FLB}
    s_mov_b32 s66, s64
    s_waitcnt vmcnt(0)""")
    C.h0_check(VZ, VH0)
    A("s_waitcnt lgkmcnt(0)\ns_barrier")
    C.stamp(R, 8, "C2")
    for t in range(4):
        for hh in range(2): A(f"ds_read_b64_tr_b16 {v(AF + 4 * t + 2 * hh, 2)}, v5 offset:{128 * t + 4 * USTR * hh}")
    for t in range(4):
        A(f"s_waitcnt lgkmcnt({6 - 2 * t})\nbuffer_store_dwordx4 {v(AF + 4 * t, 4)}, v6, {SWS}, s66 offen offset:{1024 * t} sc1")
    A("s_waitcnt vmcnt(0)")
    C.set_flag(VZ, VONE)
    C.stamp(R, 9, "pub")
    A(f"s_cmp_ge_u32 {WAVE}, 4\ns_cbranch_scc1 L_end")
    A(f"s_mov_b32 s3, 0\ns_mov_b32 {LID}, {L_WO}\ns_branch L_outproj")
```

```python
from k_common import *


def spare(C):
    A, R = C.A, "sp"
    VZ, VONE, VH0, VD = "v1", "v2", "v3", "v4"
    X = LaneExpr(A, [f"v{i}" for i in range(236, 256)])
    A(f"""L_spare:
    s_sub_u32 s68, {IDX}, 26
    s_lshl_b32 s64, {XCD}, 2
    s_lshl_b32 s65, {XCD}, 1
    s_add_u32 s65, s65, 28
    s_cmp_lt_u32 s68, 4
    s_cselect_b32 {RB}, s64, s65
    s_add_u32 {RB}, {RB}, s68
    s_mul_i32 {FLAGO}, {RB}, {FS // 4}
    s_add_u32 {FLAGO}, {FLAGO}, {WAVE}
    s_lshl_b32 {FLAGO}, {FLAGO}, 2
    s_add_u32 {FLAGO}, {FLAGO}, {FLG}
    s_mul_i32 s69, {WAVE}, 6
    s_add_u32 s69, s69, s68
    v_mov_b32 {VZ}, 0
    v_mov_b32 {VONE}, 1""")
    X(5, "v0 * 1280"); X(6, "v0 * 3840"); X(7, "v0 * 128")
    C.srds()
    A(f"s_cmp_lg_u32 s2, 255\ns_cbranch_scc1 L_sp_noclr\ns_mul_i32 s64, {WAVE}, {24 * FS}\ns_add_u32 s64, s64, {FL1}")
    X(12, f"(v0 >> 3) * {FS} + (v0 & 7) * 16")
    for i in range(4): A(f"v_mov_b32 v{8 + i}, 0")
    for i in range(3): A(f"buffer_store_dwordx4 v[8:11], v12, {SWS}, s64 offen sc1\ns_add_u32 s64, s64, {8 * FS}")
    A(f"""s_waitcnt vmcnt(0)
    s_barrier
    s_cmp_lg_u32 {WAVE}, 0
    s_cbranch_scc1 L_sp_noclr
    s_mov_b64 exec, 1
    buffer_store_dword {VONE}, {VZ}, {SDBG}, 0 offen sc1
    s_mov_b64 exec, -1
    L_sp_noclr:""")
    for u in C.plan("sp"): C.pf_unit("s69", u, 48, "v5", "v6", "v7", VD)
    C.stamp(R, 1, "pf")
    C.h0_load(VZ, VH0)
    A("s_waitcnt vmcnt(0)")
    C.h0_check(VZ, VH0)
    A("s_barrier")
    OA = 8
    C.wo_addr(X, OA)
    A("s_cmp_ge_u32 s68, 4\ns_cbranch_scc1 L_sp_nog")
    X(14, "(v0 & 7) * 16")
    X(15, f"{RB} * 64 + {WAVE} * 8 + (v0 >> 3)")
    X(13, "v15 * 1280 + v14")
    X(15, "v15 * 4")
    for i in range(10):
        A(f"buffer_load_dwordx4 {v(20 + 4 * i, 4)}, v13, {SX}, 0 offen offset:{128 * i}")
        A(f"global_load_dwordx4 {v(60 + 4 * i, 4)}, v14, s[24:25] offset:{128 * i}")
    A("v_mov_b32 v16, 0\nv_mov_b32 v17, 0")
    for i in range(10):
        A(f"s_waitcnt vmcnt({18 - 2 * i})")
        for j in range(4): A(f"v_dot2c_f32_bf16 v{16 + (j & 1)}, v{20 + 4 * i + j}, v{60 + 4 * i + j}")
    A(f"""s_nop 3
    v_add_f32 v16, v16, v17
    v_add_f32_dpp v16, v16, v16 quad_perm:[1,0,3,2] row_mask:0xf bank_mask:0xf
    v_add_f32_dpp v16, v16, v16 quad_perm:[2,3,0,1] row_mask:0xf bank_mask:0xf
    v_add_f32_dpp v16, v16, v16 row_half_mirror row_mask:0xf bank_mask:0xf
    v_mul_f32 v16, {LOG2E}, v16
    v_exp_f32_e64 v16, -v16
    v_add_f32 v16, 1.0, v16
    v_rcp_f32 v16, v16
    s_mov_b32 s64, {WS_G}
    s_mov_b32 exec_lo, 0x01010101
    s_mov_b32 exec_hi, 0x01010101
    buffer_store_dword v16, v15, {SWS}, s64 offen sc1
    s_mov_b64 exec, -1
    s_waitcnt vmcnt(0)""")
    C.set_flag(VZ, VONE)
    C.stamp(R, 2, "g")
    A("L_sp_nog:")
    for g in range(2): C.wo_group(OA, 8 * g)
    A(f"s_cmp_ge_u32 {WAVE}, 4\ns_cbranch_scc1 L_sp_nowo")
    C.wo_group(OA, 16)
    A("L_sp_nowo:\ns_waitcnt vmcnt(0)\ns_barrier")
    C.stamp(R, 3, "wo")
    A(f"s_cmp_ge_u32 {WAVE}, 4\ns_cbranch_scc1 L_end")
    A(f"s_mov_b32 s3, 0\ns_mov_b32 {LID}, {L_WO}")


def outproj(C):
    A, R = C.A, "op"
    RING = 6
    AM, AT, PF, L16, L8, BA, BA4, GA, OA, OA4, VT = 2, 4, 6, 7, 8, 9, 10, 11, 12, 13, 14
    BD, GV, ACC, BF, AF = 16, 15, 28, 48, 128
    X = LaneExpr(A, [f"v{i}" for i in range(48, 64)])
    A("L_outproj:")
    C.stamp(R, 10, "op")
    X(26, "v0 & 15", "n"); X(27, "v0 >> 4", "g")
    X(AM, f"(g * 4 + (n >> 2)) * 160 + (n & 3) * 8 + {LID}")
    X(AT, f"v{AM} + g * 2560 + 2560")
    X(AM + 1, f"v{AM} + 51200"); X(AT + 1, f"v{AT} + 51200")

    def reads(st):
        f, r = AF + 20 * (st % RING), []
        for t in range(5):
            for hf in range(2):
                a_, o = (AM, (40 * st + 20 * hf) * 160) if st < 16 else (AT, (2 * (st - 16) + hf) * 12800)
                r.append(f"ds_read_b64_tr_b16 {v(f + 4 * t + 2 * hf, 2)}, v{a_ + o // 51200} offset:{o % 51200 + 32 * t}")
        return r

    for st in range(RING):
        for x in reads(st): A(x)
    A(f"""s_and_b32 s64, {IDX}, 3
    s_lshl_b32 s65, {XCD}, 2
    s_add_u32 s64, s64, s65
    s_lshl_b32 s67, s64, 2
    s_add_u32 s67, s67, {WAVE}
    s_lshr_b32 s68, {IDX}, 2
    s_mul_i32 s69, s68, 10""")
    X.env.update(rblk="s64", rt="s67", cb="s68", cg="s69")
    X(PF, f"((rt >> 1) * {FS} + {FL2}) if v0 < 8 else ((cb * 8 + {XCD}) * {FS} + {FLB - 32})")
    X(PF, f"(v{PF} if v0 < 18 else (rblk * {FS} + {WAVE} * 8 + {FLG - 72})) + v0 * 4")
    X(L16, "v0 * 16"); X(L8, "v0 * 8")
    X(1, "rt * 16 + n", "row")
    X(VT, "(g & 1) * 2 + (g >> 1)")
    X(BA, f"(cg + v{VT}) * 32768 + row * 16 + {WS_B}")
    X(BA4, f"(cg + 8 + (g >> 1)) * 32768 + row * 16 + (g & 1) * 8 + {WS_B}")
    X(GA, f"row * 4 + {WS_G}")
    X(OA4, "row * 1280 + cb * 160")
    X(OA, f"v{OA4} + v{VT} * 16"); X(OA4, f"v{OA4} + g * 8 + 128")
    A(f"s_mul_i32 s66, s67, 20480\ns_add_u32 s66, s66, {WS_O}")
    A("s_cmp_eq_u32 s3, 0\ns_cbranch_scc1 L_op_now\ns_waitcnt vmcnt(0)\ns_barrier\nL_op_now:")
    C.stamp(R, 11, "W")
    C.poll(f"v{PF}", f"v{VT}", 20, need=0xff, sleep=C.o.get("sl2", 2))
    C.stamp(R, 12, "F2")
    A("s_mov_b32 s3, vcc_lo")
    for st in range(16):
        if st % 4 == 0 and st: A("s_add_u32 s66, s66, 4096")
        A(f"buffer_load_dwordx4 {v(BF + 4 * st, 4)}, v{L16}, {SWS}, s66 offen offset:{1024 * (st % 4)} sc1")
    A("s_add_u32 s66, s66, 4096\ns_mov_b32 s67, 131072")
    for q in range(8): A(f"buffer_load_dwordx2 {v(BF + 64 + 2 * q, 2)}, v{L8}, {SWS}, s66 offen offset:{512 * q} sc1")
    bload = f"""buffer_load_dwordx4 {v(BD, 4)}, v{BA}, {SWS}, 0 offen sc1
    buffer_load_dwordx4 {v(BD + 4, 4)}, v{BA}, {SWS}, s67 offen sc1
    buffer_load_dwordx2 {v(BD + 8, 2)}, v{BA4}, {SWS}, 0 offen sc1
    buffer_load_dword v{GV}, v{GA}, {SWS}, 0 offen sc1"""
    A(bload)
    for st in range(20):
        left = 27 - st if st < 16 else 10 - 2 * (st - 16)
        lg = 0 if st == 0 or st == 19 else 10
        A(f"s_waitcnt vmcnt({left}) lgkmcnt({lg})")
        f = AF + 20 * (st % RING)
        m = [f"{MF} {v(ACC + 4 * t, 4)}, {v(f + 4 * t, 4)}, {v(BF + 4 * st, 4)}, {v(ACC + 4 * t, 4) if st else 0}" for t in range(5)]
        nx = st - 1 + RING
        interleave(A, m, reads(nx) if 0 < st and nx < 20 else [], per=2)
    C.stamp(R, 13, "mm")
    A("s_cmp_eq_u32 s3, 0\ns_cbranch_scc1 L_op_bok")
    C.poll(f"v{PF}", f"v{VT}", 20, sleep=1)
    A(bload)
    A("L_op_bok:\ns_waitcnt vmcnt(0)")
    U = BF
    for j in range(10): A(f"v_lshlrev_b32 v{U + 2 * j}, 16, v{BD + j}\nv_and_b32 v{U + 2 * j + 1}, 0xffff0000, v{BD + j}")
    for p in range(2):
        for i in range(4): A(f"v_permlane16_swap_b32 v{ACC + 8 * p + i}, v{ACC + 8 * p + 4 + i}")
    for i in range(20): A(f"v_sub_f32 v{ACC + i}, v{ACC + i}, v{U + i}")
    for i in range(20): A(f"v_fma_f32 v{ACC + i}, v{ACC + i}, v{GV}, v{U + i}")
    for j in range(10): C.cvt(BD + j, ACC + 2 * j, ACC + 2 * j + 1)
    A(f"""buffer_store_dwordx4 {v(BD, 4)}, v{OA}, {SOUT}, 0 offen
    buffer_store_dwordx4 {v(BD + 4, 4)}, v{OA}, {SOUT}, 0 offen offset:64
    buffer_store_dwordx2 {v(BD + 8, 2)}, v{OA4}, {SOUT}, 0 offen""")
    C.stamp(R, 14, "st")
```

```python
from k_common import *


def attn_ids(C):
    C.A(f"""s_lshr_b32 {RB}, {XCD}, 1
    s_lshl_b32 {RB}, {RB}, 2
    s_and_b32 s63, {IDX}, 3
    s_add_u32 {RB}, {RB}, s63
    s_and_b32 {QUAD}, {XCD}, 1
    s_lshl_b32 {QUAD}, {QUAD}, 2
    s_lshr_b32 s63, {IDX}, 2
    s_add_u32 {QUAD}, {QUAD}, s63
    s_mov_b32 s10, {LOG2E}
    s_mov_b32 s11, {EPS}
    s_cmp_ge_u32 {WAVE}, 4
    s_cbranch_scc1 L_loader""")


def compute(C):
    A, R = C.A, "kv"
    VZ, VONE, VD, VH0, VNE = "v1", "v2", "v3", "v4", "v5"
    XA, WM, WT = 6, 10, 14
    SCA, SCB, L16, PF1, OA = 18, 19, 20, 21, 22
    EP, EPM, SEL, MSK, FR, ACC = 28, 32, 36, 44, 84, 176
    X = LaneExpr(A, [f"v{i}" for i in range(156, 172)])
    A(f"v_mov_b32 {VZ}, 0\nv_mov_b32 {VONE}, 1")
    X(172, "v0 * 1280"); X(173, "v0 * 3840")
    C.srds()
    pf = C.plan("kv")
    npf = len(pf)
    A(f"s_lshl_b32 s67, {WAVE}, 4\ns_add_u32 s67, s67, {IDX}")
    for u in pf: C.pf_unit("s67", u, 64, "v172", "v173", None, VD)
    C.stamp(R, 1, "pf")
    A(f"""s_lshl_b32 s67, {QUAD}, 2
    s_add_u32 s67, s67, {WAVE}
    s_lshl_b32 s67, s67, 14
    s_add_u32 s67, s67, {WS_KV}
    s_lshl_b32 s8, {RB}, 10
    s_add_u32 s8, s8, s67
    s_lshl_b32 {FLAGO}, {QUAD}, 11
    s_add_u32 {FLAGO}, {FLAGO}, {FLK}""")
    X(PF1, f"v0 * 128 + {FLAGO}")
    A(f"s_lshl_b32 s63, {RB}, 7\ns_add_u32 {FLAGO}, {FLAGO}, s63")
    A(f"s_lshr_b32 s68, {WAVE}, 1\ns_and_b32 s69, {WAVE}, 1")
    X.env.update(wr="s68", wp="s69")
    X(174, "v0 & 15", "n"); X(175, "v0 >> 4", "g")
    for ks in range(2):
        X(XA + ks, f"(wr * 64 + n) * 128 + ((({4 * ks} + g) ^ (n >> 1)) * 16)")
        X(XA + 2 + ks, f"v{XA + ks} + {2 * SLOT}")
    for hh in range(2):
        X(172, f"(g * 8 + (({hh} ^ (g & 1)) * 4) + (n >> 2)) * 160 + wp * 80 + 16384")
        X(WM + hh, "v172 + (n & 3) * 8")
        X(WT + hh, "v172 + 32 + (n & 1) * 40 + ((n >> 1) & 1) * 10256")
        X(WM + 2 + hh, f"v{WM + hh} + {2 * SLOT}")
        X(WT + 2 + hh, f"v{WT + hh} + {2 * SLOT}")
    X(L16, "v0 * 16")
    C.wo_addr(X, OA)
    X(172, "wp * 2 + ((n >> 2) & 1)", "h")
    X(173, "((8 + h) * 64 + (n & 3) * 4 + h) if n < 8 else ((4 + h) * 64 + h * 4 + (n & 3))")
    X(SCA, f"{L_OP} + (((wp * 128 + v0) if wr == 0 else (v173 + g * 16)) * 16)")
    X(172, "wp * 2 + (g & 1)", "h")
    X(173, f"((4 + h) * 64 + h * 20 + (n & 3)) if (n >> 2) == g else (768 + (v0 >> 1))")
    X(173, "((8 + h) * 64 + n * 4 + h * 17) if n < 4 else v173")
    X(173, "(h * 80 + n) if g < 2 else v173")
    X(SCB, f"{L_OP} + (((wp * 128 + 64 + v0) * 16) if wr == 0 else (v173 * 16 + 8))")
    A(f"v_mov_b32 {VNE}, {NEPSL}")
    X(EPM, f"{EPS} if n < 8 else 0")
    for i in range(4):
        A(f"v_mov_b32 v{EP + i}, s11")
        if i: A(f"v_mov_b32 v{EPM + i}, v{EPM}")
    X(172, "(16256 << ((n & 1) * 16)) if (n >> 2) == g else 0")
    X(SEL + 2, "v172 if (n & 2) == 0 else 0"); X(SEL + 3, "v172 if (n & 2) != 0 else 0")
    A(f"v_mov_b32 v{SEL + 4}, v{SEL + 2}\nv_mov_b32 v{SEL + 5}, v{SEL + 3}")
    for i in (0, 1, 6, 7): A(f"v_mov_b32 v{SEL + i}, 0")
    X(172, f"{0x3F803F80} if n < 4 else 0"); X(173, f"{0x3F803F80} if (n >> 2) == 1 else 0")
    for gm in range(2):
        for i in range(20):
            A(f"v_mov_b32 v{MSK + 20 * gm + i}, {'v172' if 12 <= i < 16 else 'v173' if i >= 16 else 0}")
    X(172, f"v{L16} + {WAVE} * 3072 + {L_OP}")
    for i in range(3): A(f"ds_write_b128 v172, {v(MSK, 4)} offset:{1024 * i}")
    A("s_waitcnt lgkmcnt(0)")
    A(f"""s_mul_i32 s63, s69, {L_RED[1] - L_RED[0]}
    s_mul_i32 s64, s69, {L_RED[3] - L_RED[2]}
    s_add_u32 s63, s63, {L_RED[0]}
    s_add_u32 s64, s64, {L_RED[2]}
    s_cmp_eq_u32 s68, 0
    s_cselect_b32 s65, s63, s64
    s_cselect_b32 s64, s64, s63
    v_add_u32 v172, s64, v{L16}
    v_add_u32 v173, s65, v{L16}
    s_setprio {C.o.get("prio", 2)}""")
    for i in range(4): A(f"v_mov_b32 v{156 + i}, -1")
    A(f"buffer_store_dwordx4 v[156:159], v{L16}, {SWS}, s8 offen sc1")
    C.stamp(R, 2, "rdy")

    def reads(st):
        c, ks = st >> 1, st & 1
        hi, off, f = ((c & 3) >> 1) * 2, (c & 1) * SLOT, FR + 36 * (st & 1)
        r = [f"ds_read_b128 {v(f + 4 * rt, 4)}, v{XA + hi + ks} offset:{off + 2048 * rt}" for rt in range(4)]
        for ct in range(5):
            for hh in range(2):
                a, o = (WM, (0, 40, 10256, 10296)[ct]) if ct < 4 else (WT, 0)
                r.append(f"ds_read_b64_tr_b16 {v(f + 16 + 4 * ct + 2 * hh, 2)}, v{a + hi + hh} offset:{off + 5120 * ks + o}")
        return r

    def mfmas(st):
        f, m = FR + 36 * (st & 1), []
        for ct in (0, 1, 4, 2, 3):
            for rt in range(4):
                d = v(ACC + 20 * rt + 4 * ct, 4)
                c = d if st else (v(EP, 4) if ct < 2 else v(EPM, 4) if ct == 4 else "0")
                m.append(f"{MF} {d}, {v(f + 4 * rt, 4)}, {v(f + 16 + 4 * ct, 4)}, {c}")
        return m

    A("s_barrier")
    C.stamp(R, 3, "B0")
    for r in reads(0): A(r)
    A("s_waitcnt lgkmcnt(0)")
    hc = C.o.get("hc", 5)
    for c in range(10):
        m = mfmas(2 * c)
        interleave(A, m[:-1], reads(2 * c + 1), per=2)
        A(f"s_waitcnt {'vmcnt(0) ' if c == hc else ''}lgkmcnt(0)" + ("\ns_barrier" if c < 9 else ""))
        A(m[-1])
        if c == 4: C.stamp(R, 4, "B5")
        if c == hc - 2: C.h0_load(VH0, VD)
        if c == hc: C.only(WAVE, 0, lambda: (C.settle(VH0, VD, 2, SDBG), C.set_flag(VZ, VONE, FLAGO)))
        if c == 8: C.only(WAVE, 0, lambda: C.probe(VH0, f"v{PF1}", 16))
        m = mfmas(2 * c + 1)
        interleave(A, m[:-1], reads(2 * c + 2) if c < 9 else [], per=2)
        A("s_waitcnt lgkmcnt(0)")
        A(m[-1])
    C.stamp(R, 5, "kvend")
    acc = lambda rt, ct: ACC + 20 * rt + 4 * ct
    tmp = list(range(156, 164))
    C.phi([acc(rt, ct) + i for ct in (0, 1) for rt in range(4) for i in range(4)], tmp, VNE)
    A("s_mov_b32 exec_lo, 0x00ff00ff\ns_mov_b32 exec_hi, 0x00ff00ff")
    C.phi([acc(rt, 4) + i for rt in range(4) for i in range(4)], tmp, VNE)
    A("s_mov_b64 exec, -1")
    PK, T = FR, FR + 40
    for gm in range(2):
        for ct in (4, 0, 1, 2, 3):
            for j in range(4):
                s0 = acc(2 * gm + (j >> 1), ct) + 2 * (j & 1)
                C.cvt(PK + 20 * gm + 4 * ct + j, s0, s0 + 1)
        for k, (ctl, bm) in enumerate((("quad_perm:[0,1,2,3]", 1), ("quad_perm:[0,1,2,3]", 2), ("row_ror:8", 12),
                                       ("quad_perm:[0,1,2,3]", 4), ("quad_perm:[0,1,2,3]", 8))):
            for j in range(4):
                A(f"v_mov_b32_dpp v{MSK + 20 * gm + 4 * k + j}, v{PK + 20 * gm + 16 + j} {ctl} row_mask:0xf bank_mask:{hex(bm)}")
        p = lambda ct: v(PK + 20 * gm + 4 * ct, 4)
        q = lambda k: v(MSK + 20 * gm + 4 * k, 4)
        seen = set()
        for t, a_, b_ in ((0, p(0), p(2)), (1, p(1), p(3)), (2, p(0), q(3)), (3, q(0), p(2)), (2, p(1), q(4)),
                          (3, q(1), p(3)), (3, q(2), q(3)), (3, q(2), q(4))):
            d = v(T + 4 * t, 4)
            A(f"{MF} {d}, {a_}, {b_}, {d if gm or t in seen else 0}")
            seen.add(t)
    A(f"s_cmp_eq_u32 s68, 0\ns_cbranch_scc1 L_kv_nosw")
    for i in range(8): A(f"v_swap_b32 v{T + i}, v{T + 8 + i}")
    A("L_kv_nosw:")
    A(f"ds_write_b128 v172, {v(T + 8, 4)}\nds_write_b128 v172, {v(T + 12, 4)} offset:1024\ns_waitcnt vmcnt(0)")
    C.only(WAVE, 0, lambda: C.settle(VH0, f"v{PF1}", 16))
    A("s_waitcnt lgkmcnt(0)\ns_barrier")
    C.stamp(R, 6, "R")
    A(f"ds_read_b128 {v(T + 8, 4)}, v173\nds_read_b128 {v(T + 12, 4)}, v173 offset:1024")
    A("s_waitcnt lgkmcnt(0)")
    for i in range(8): A(f"v_add_f32 v{T + i}, v{T + i}, v{T + 8 + i}")
    for i in range(4): C.cvt(T + 8 + i, T + 2 * i, T + 2 * i + 1)
    A(f"s_bitcmp0_b32 {RB}, 0\ns_cbranch_scc1 L_kv_even\nv_swap_b32 v{T + 8}, v{T + 10}\nv_swap_b32 v{T + 9}, v{T + 11}\nL_kv_even:")
    A(f"buffer_store_dwordx4 {v(T + 8, 4)}, v{L16}, {SWS}, s8 offen sc1")
    C.stamp(R, 7, "pub1")
    G = ACC
    A("s_add_u32 s4, s67, 4096\ns_add_u32 s5, s67, 8192\ns_add_u32 s6, s67, 12288\ns_mov_b32 s7, 0")
    pieces = [(G + 4 * r + 3, f"buffer_load_dwordx4 {v(G + 4 * r, 4)}, v{L16}, {SWS}, {('s67', 's4', 's5', 's6')[r >> 2]} offen offset:{1024 * (r % 4)} sc1") for r in range(16)]

    def total(extra):
        chk = C.tags([p_[0] for p_ in pieces], VD)
        A(f"s_waitcnt vmcnt({15 + extra})\n{MF} {v(T, 4)}, {v(SEL + 4, 4)}, {v(G, 4)}, 0")
        for i in range(15):
            d = v(T + (0 if i & 1 else 4), 4)
            A(f"s_waitcnt vmcnt({14 - i + extra})\n{MF} {d}, {v(SEL + 2, 4)}, {v(G + 2 + 4 * i, 4)}, {d if i else 0}")
            if i & 1: A(chk.pop(0))
        A(f"{MF} {v(T, 4)}, {v(SEL, 4)}, {v(G + 60, 4)}, {v(T, 4)}")
        for x in chk: A(x)

    wf = C.o.get("wofirst", 2)
    for g in range(wf): C.wo_group(OA, 4 * g, L_WOA)
    for _, ld in pieces: A(ld)
    for g in range(wf, 2): C.wo_group(OA, 4 * g, L_WOA)
    total(10 - 5 * wf)
    A(f"s_cbranch_vccz L_kv_got\nL_kv_retry:\ns_add_u32 s7, s7, 1")
    if C.o.get("sl1", 0): A(f"s_sleep {C.o['sl1']}")
    C.reload(pieces)
    total(0)
    A(f"s_cmp_ge_u32 s7, {SPIN}\ns_cbranch_scc1 L_kv_got\ns_cbranch_vccnz L_kv_retry\nL_kv_got:")
    C.stamp(R, 8, "F1")
    for i in (2, 3, 0, 1): C.cvt(T + 8 + i, T + 2 * i, T + 2 * i + 1)
    A(f"ds_write_b64 v{SCB}, {v(T + 10, 2)}\nds_write_b64 v{SCA}, {v(T + 8, 2)}\ns_waitcnt lgkmcnt(0)\ns_barrier")
    C.stamp(R, 9, "S")
    ws = C.o.get("ws", 1)
    for g in range(2, 2 + ws): C.wo_group(OA, 4 * g, L_WOA)
    A(f"s_setprio 0\ns_waitcnt vmcnt({5 * ws})\ns_barrier")
    for g in range(2 + ws, 5): C.wo_group(OA, 4 * g, L_WOA)
    A(f"s_mov_b32 s3, 1\ns_mov_b32 {LID}, {L_WOA}\ns_branch L_outproj")


def loader(C):
    A, R = C.A, "ld"
    VZ = "v1"
    XD, WD, XR = 2, 6, 11
    FW, ACC, XF = 16, 56, 96
    X = LaneExpr(A, [f"v{i}" for i in range(20, 36)])
    A(f"L_loader:\ns_sub_u32 s68, {WAVE}, 4\nv_mov_b32 {VZ}, 0")
    X.env.update(w="s68")
    A(f"s_lshl_b32 s63, {RB}, 2\ns_add_u32 s63, s63, s68\ns_mul_i32 s63, s63, {32 * 1280}")
    X(16, "(v0 >> 3) * 1280 + s63")
    for t in range(2):
        X(XD + t, f"v16 + {8 * t * 1280} + (((v0 & 7) ^ ({4 * t} + (v0 >> 4))) * 16)")
        X(XD + 2 + t, f"v{XD + t} + {16 * 1280}")
    A("s_and_b32 s63, s68, 1\ns_lshl_b32 s63, s63, 5")
    for t in range(5):
        X(16, f"((v0 + {64 * t}) * 6554) >> 16")
        X(WD + t, f"((v16 ^ ((v16 >> 1) & 4)) + s63) * 3840 + ((v0 + {64 * t} - v16 * 10) * 16)")
    A(f"""s_lshr_b32 s69, s68, 1
    s_mul_i32 s3, {QUAD}, 160
    s_mul_i32 s66, s69, 1280
    s_add_u32 s66, s66, s3
    s_add_u32 s66, s66, 1280
    s_lshl_b32 s64, s68, 12
    s_mul_i32 s65, s69, 10256
    s_and_b32 s63, s68, 1
    s_mul_i32 s63, s63, 5120
    s_add_u32 s65, s65, s63
    s_mul_i32 s67, s69, {64 * 3840}
    s_add_u32 s3, s3, s67
    s_mul_i32 s67, s69, 10240
    s_add_u32 s67, s67, s63""")
    C.srds()

    def chunk(c):
        sl = (c & 3) * SLOT
        if C.o.get("xnodma") and c > 1: return
        A(f"s_mov_b32 s63, {128 * c}")
        for t in range(4): C.dma(v(XD + t), SX, "s63", "s64", sl + 1024 * t)
        for t in range(5): C.dma(v(WD + t), SW, "s66", "s65", sl + 16384 + 1024 * t)
        A(f"s_add_u32 s66, s66, {64 * 3840}")

    def wq(p):
        if p == 3:
            A(f"s_mul_i32 s63, s69, {2 * SLOT + 7 * 10240}\ns_sub_u32 s63, s67, s63")
            base, add = "s63", 2 * SLOT + 6 * 10240
        else:
            base, add = "s67", (2 * SLOT + 2 * p * 10240 if p < 3 else 10240)
        for t in range(5): C.dma(v(WD + t), SW, "s3", base, add + 1024 * t)
        A(f"s_add_u32 s3, s3, {128 * 3840}")

    LA = C.o.get('la', 1)
    for c in range(LA + 1): chunk(c)
    C.stamp(R, 1, "iss")
    X(16, "v0 & 15", "n"); X(17, "v0 >> 4", "g")
    for ks in range(2):
        X(XR + ks, f"(w * 32 + n) * 128 + ((({4 * ks} + g) ^ (n >> 1)) * 16)")
        X(XR + 2 + ks, f"v{XR + ks} + {2 * SLOT}")
    for hh in range(2):
        X(18, f"(g * 8 + (({hh} ^ (g & 1)) * 4) + (n >> 2)) * 160 + {2 * SLOT}")
        X(ACC + hh, "v18 + (n & 3) * 8")
        X(ACC + 2 + hh, "v18 + 32 + (n & 3) * 40")
    items = [("c", c, max(0, c - 3)) for c in range(10)] + [("q", p, (7, 8, 8, 9, 9)[p]) for p in range(5)]
    cnt = lambda it: 9 if it[0] == "c" else 5
    nxt = LA + 1
    grow = C.o.get('grow', 10)
    for c in range(10):
        A(f"s_waitcnt vmcnt({sum(cnt(it) for it in items[c + 1:nxt])}) lgkmcnt(0)\ns_barrier")
        if c == 0: C.stamp(R, 2, "B0")
        for ks in range(2):
            for rt in range(2):
                A(f"ds_read_b128 {v(XF + 16 * c + 8 * ks + 4 * rt, 4)}, v{XR + ((c & 3) >> 1) * 2 + ks} offset:{(c & 1) * SLOT + 2048 * rt}")
        budget = 18 if c >= grow else 9
        while nxt < 15 and items[nxt][2] <= c and (budget > 0 or c == 9):
            (chunk if items[nxt][0] == "c" else wq)(items[nxt][1])
            budget -= cnt(items[nxt]); nxt += 1
    QA, EP, VNE = 2, 12, "v11"
    A(f"""s_lshl_b32 s4, {RB}, 2
    s_add_u32 s4, s4, s68
    s_mul_i32 s4, s4, 40960
    s_add_u32 s4, s4, {WS_O}
    s_lshl_b32 s5, {QUAD}, 9
    s_add_u32 s5, s5, s4
    s_add_u32 s5, s5, 16384
    s_lshl_b32 s63, {QUAD}, 11
    s_add_u32 s4, s4, s63
    s_add_u32 s6, s4, 20480
    s_add_u32 s7, s5, 20480
    s_lshl_b32 {FLAGO}, {RB}, 3
    s_add_u32 {FLAGO}, {FLAGO}, {QUAD}
    s_lshl_b32 {FLAGO}, {FLAGO}, 7
    s_add_u32 {FLAGO}, {FLAGO}, {FLO}
    v_lshlrev_b32 v6, 4, v0
    v_lshlrev_b32 v7, 3, v0
    v_mov_b32 v9, 1""")
    for i in range(4): A(f"v_mov_b32 v{40 + i}, -1")
    ost = lambda rt, p, q, r: (f"buffer_store_dwordx4 {v(p, 4)}, v6, {SWS}, s{4 + 2 * rt} offen sc1\nbuffer_store_dwordx4 {v(q, 4)}, v6, {SWS}, s{4 + 2 * rt} offen offset:1024 sc1",
                               f"buffer_store_dwordx2 {v(r, 2)}, v7, {SWS}, s{5 + 2 * rt} offen sc1")
    for rt in range(2):
        for x in ost(rt, 40, 40, 40): A(x)
    A(f"v_add_u32 v8, {L_OP}, v6\ns_waitcnt vmcnt(6) lgkmcnt(0)")
    C.stamp(R, 3, "Wq")
    for i in range(4): A(f"v_mov_b32 v{QA + i}, v{ACC + i}\nv_mov_b32 v{EP + i}, s11")
    A(f"v_mov_b32 {VNE}, {NEPSL}\ns_barrier")
    C.stamp(R, 4, "R")

    def reads(st):
        c, ks, f, r = st >> 1, st & 1, FW + 20 * (st & 1), []
        off = 5120 * ks + 10240 * (c if c < 4 else c - 4 if c < 7 else c - 7)
        pre = ""
        if st in (8, 14):
            add = 40960 if st == 8 else -(40960 + 2 * SLOT)
            pre = "".join(f"v_add_u32 v{QA + i}, {add}, v{QA + i}\n" for i in range(4))
        for ct in range(5):
            for hh in range(2):
                a_, o = (QA, 40 * ct) if ct < 4 else (QA + 2, 0)
                r.append(pre + f"ds_read_b64_tr_b16 {v(f + 4 * ct + 2 * hh, 2)}, v{a_ + hh} offset:{off + o}")
                pre = ""
        return r

    for r in reads(0): A(r)
    for st in range(20):
        f, nx = FW + 20 * (st & 1), reads(st + 1) if st < 19 else []
        for ct in range(5):
            A(f"s_waitcnt lgkmcnt({8 if nx else 8 - 2 * ct})")
            for rt in range(2):
                d = v(ACC + 20 * rt + 4 * ct, 4)
                A(f"{MF} {d}, {v(f + 4 * ct, 4)}, {v(XF + 8 * st + 4 * rt, 4)}, {d if st else v(EP, 4)}")
                if nx: A(nx[2 * ct + rt])
    C.stamp(R, 5, "qend")
    C.phi([ACC + 20 * rt + 4 * ct + i for ct in range(5) for rt in range(2) for i in range(4)], list(range(16, 24)), VNE)
    BQ, AO, O = 96, 128, 176
    for rt in range(2):
        for h in range(4):
            b = BQ + 16 * rt + 4 * h
            for j in range(2):
                C.cvt(b + j, ACC + 20 * rt + 4 * h + 2 * j, ACC + 20 * rt + 4 * h + 2 * j + 1)
                C.cvt(b + 2 + j, ACC + 20 * rt + 16 + 2 * j, ACC + 20 * rt + 16 + 2 * j + 1)
    A("s_waitcnt vmcnt(0)")
    C.stamp(R, 6, "phiq")
    A("s_barrier\ns_setprio 3")
    C.stamp(R, 7, "S")
    order = [8, 9, 10, 11, 0, 1, 2, 3, 4, 5, 6, 7]
    for k in order: A(f"ds_read_b128 {v(AO + 4 * k, 4)}, v8 offset:{1024 * k}")
    C.only(WAVE, 4, lambda: C.set_flag(VZ, "v9", FLAGO))
    for rt in range(2):
        o = O + 24 * rt
        for i, k in enumerate(order):
            h = k & 3
            if rt == 0: A(f"s_waitcnt lgkmcnt({11 - i})")
            d = v(o + (4 * h if k < 4 else 16 if k < 8 else 20), 4)
            c = "0" if k <= 4 else v(EP, 4) if k == 8 else d
            A(f"{MF} {d}, {v(AO + 4 * k, 4)}, {v(BQ + 16 * rt + 4 * h, 4)}, {c}")
    for rt in range(2):
        o, p = O + 24 * rt, 16 + 12 * rt
        for h in range(4): A(f"v_rcp_f32 v{o + 20 + h}, v{o + 20 + h}")
        for h in range(4):
            for i in range(4): A(f"v_mul_f32 v{o + 4 * h + i}, v{o + 4 * h + i}, v{o + 20 + h}")
        for h in range(1, 4):
            A(f"v_mov_b32_dpp v{o + 20}, v{o + 20 + h} quad_perm:[0,1,2,3] row_mask:{hex(1 << h)} bank_mask:0xf")
        for j in range(8): C.cvt(p + j, o + 2 * j, o + 2 * j + 1)
        for i in range(4): A(f"v_mul_f32 v{o + 16 + i}, v{o + 16 + i}, v{o + 20}")
        A(ost(rt, p, p + 4, p + 8)[0])
        for j in range(2): C.cvt(p + 8 + j, o + 16 + 2 * j, o + 17 + 2 * j)
        A(ost(rt, p, p + 4, p + 8)[1])
    C.stamp(R, 8, "ost")
    A("s_barrier")
    C.finish()
```

```python
from asmlib import *

SX, SW, SO, SWS, SDBG, SOUT = "s[32:35]", "s[36:39]", "s[40:43]", "s[44:47]", "s[48:51]", "s[52:55]"
WAVE, XCD, IDX, LID, FLAGO, RB, QUAD = "s56", "s57", "s58", "s59", "s60", "s61", "s62"
WS_FLAG, WS_KV, WS_O, WS_B, WS_G, WS_STAMP = 0, 0x100000, 0x200000, 0x500000, 0x800000, 0x8000000
SLOT = 36880
L_WO = 2 * SLOT - 30720
L_WOA = 2 * SLOT - 40960
L_RED = (34816, 30720, 145440, 160320)
L_OP = 4 * SLOT
L_DUMP = L_OP + 12288
LDS_BYTES = 163840
USTR = 4672
L_T = L_WO + 102400
TSTR = 1824
MF = "v_mfma_f32_16x16x32_bf16"
EPS = 0x358637BD
LOG2E = 0x3FB8AA3B
NEPSL = 0xB5C1A2A0
SPIN = 200000
FLK = WS_G + 8192
FLO, FLB = FLK + 128 * 128, FLK + 256 * 128


class Ctx:
    def __init__(self, opts):
        self.A = Asm()
        self.o = opts
        self.dbg = opts.get("stamps", False)
        self.names = {}
        self.tick = "s_memtime" if self.dbg == 2 else "s_memrealtime"

    def stamp(self, role, slot, name):
        if self.dbg:
            self.names.setdefault(role, {})[slot] = name
            self.A(f"{self.tick} {s(70 + 2 * slot, 2)}")

    def finish(self):
        A = self.A
        if self.dbg:
            A("s_branch L_dump")
        else:
            A("s_endpgm")

    def dump(self):
        A = self.A
        if not self.dbg:
            return
        A(f"L_dump:\ns_waitcnt vmcnt(0)\n{self.tick} s[100:101]\ns_waitcnt lgkmcnt(0)\ns_mov_b64 exec, -1")
        A(f"s_lshl_b32 s63, s2, 3\ns_add_u32 s63, s63, {WAVE}\ns_lshl_b32 s63, s63, 6\ns_add_u32 s63, s63, {WS_STAMP}\nv_mov_b32 v1, 0")
        for i in range(16):
            A(f"v_mov_b32 v{4 + i}, s{70 + 2 * i}")
        A("s_mov_b64 exec, 1")
        for i in range(4):
            A(f"buffer_store_dwordx4 {v(4 + 4 * i, 4)}, v1, {SWS}, s63 offen offset:{16 * i}")
        A("s_waitcnt vmcnt(0)\ns_endpgm")

    def srds(self):
        A = self.A
        A("s_waitcnt lgkmcnt(0)")
        for base, ptr in ((32, 4), (36, 6), (44, 30), (40, 8), (48, 28), (52, 26)):
            A(f"s_mov_b64 {s(base, 2)}, {s(ptr, 2)}")

    def plan(self, role):
        txt = self.o.get("pf" + role, {"kv": "", "cv": "k18", "c2": "o48", "sp": "k98,k146+q0,q14+c0,c12,o0,g0,w0"}[role])
        return [[(p[0], int(p[1:])) for p in t.split("+")] for t in str(txt).split(",") if len(t) > 1]

    def pf_unit(self, su, chain, n, vx, vw, vlin, vd):
        A, used = self.A, 0
        end = A.label("pe")
        for kind, first in chain:
            cnt = {"k": 180, "q": 50, "o": 100, "c": 64}[kind] - first
            nx = A.label("pn")
            if used + cnt < n: A(f"s_cmp_ge_u32 {su}, {used + cnt}\ns_cbranch_scc1 {nx}")
            A(f"s_add_i32 s63, {su}, {first - used}")
            self.pf_one(kind, vx, vw, vlin, vd)
            if used + cnt >= n: break
            A(f"s_branch {end}\n{nx}:")
            used += cnt
        else:
            A(f"s_mov_b64 exec, 1\nbuffer_load_dword {vd}, {vx}, {SX}, 0 offen\ns_mov_b64 exec, -1")
        A(f"{end}:")

    def pf_one(self, kind, vx, vw, vlin, vd):
        if kind == "k": self.pf_kv("s63", vx, vw, vd)
        elif kind == "q": self.pf_wq("s63", vw, vd)
        elif kind == "o": self.pf_wo("s63", vx, vd)
        else:
            self.A(f"""s_lshr_b32 s64, {XCD}, 2
            s_add_u32 s64, s64, 8
            s_cmp_ge_u32 s63, 32
            s_cselect_b32 s64, {XCD}, s64
            s_lshl_b32 s64, s64, 7
            s_and_b32 s63, s63, 31
            s_mul_i32 s63, s63, {64 * 1280}
            s_add_u32 s64, s64, s63
            buffer_load_dword {vd}, {vx}, {SX}, s64 offen""")

    def only(self, who, val, body):
        A, l = self.A, self.A.label("one")
        A(f"s_cmp_lg_u32 {who}, {val}\ns_cbranch_scc1 {l}")
        body()
        A(f"{l}:")

    def set_flag(self, vz, vone, soff, srd=SWS):
        self.A(f"s_mov_b64 exec, 1\nbuffer_store_dword {vone}, {vz}, {srd}, {soff} offen sc1\ns_mov_b64 exec, -1")

    def probe(self, vt, va, nl, srd=SWS):
        self.A(f"s_mov_b64 exec, {(1 << nl) - 1}\nbuffer_load_dword {vt}, {va}, {srd}, 0 offen sc1\ns_mov_b64 exec, -1")

    def settle(self, vt, va, nl, srd=SWS, sleep=2):
        A = self.A
        l, d = A.label("fl"), A.label("fd")
        A(f"""s_mov_b32 s63, 0
        s_mov_b64 exec, {(1 << nl) - 1}
        {l}:
        v_cmp_ne_u32 vcc, 1, {vt}
        s_add_u32 s63, s63, 1
        s_cbranch_vccz {d}
        s_cmp_ge_u32 s63, {SPIN}
        s_cbranch_scc1 {d}""")
        if sleep: A(f"s_sleep {sleep}")
        A(f"""buffer_load_dword {vt}, {va}, {srd}, 0 offen sc1
        s_waitcnt vmcnt(0)
        s_branch {l}
        {d}:
        s_mov_b64 exec, -1""")

    def h0_load(self, vt, va):
        self.A(f"v_lshlrev_b32 {va}, 7, v0")
        self.only(WAVE, 0, lambda: self.probe(vt, va, 2, SDBG))

    def h0_check(self, vt, va):
        self.only(WAVE, 0, lambda: self.settle(vt, va, 2, SDBG, 4))

    def tags(self, regs, vt):
        regs, out = list(regs), []
        cur = f"v{regs.pop(0)}"
        while regs:
            two = regs[:2]; regs = regs[2:]
            out.append(f"v_max3_u32 {vt}, {cur}, v{two[0]}, v{two[-1]}")
            cur = vt
        return out + [f"v_cmp_eq_u32 vcc, -1, {cur}"]

    def reload(self, pieces):
        A = self.A
        for i in range(0, len(pieces), 10):
            grp = pieces[i:i + 10]
            for k, (t, _) in enumerate(grp): A(f"v_cmp_eq_u32_e64 {s(12 + 2 * k, 2)}, -1, v{t}")
            for k, (_, ld) in enumerate(grp): A(f"s_mov_b64 exec, {s(12 + 2 * k, 2)}\n{ld}")
            A("s_mov_b64 exec, -1")

    def dma(self, va, srd, soff, m0base, m0add):
        self.A(f"s_add_u32 m0, {m0base}, {m0add}\nbuffer_load_dwordx4 {va}, {srd}, {soff} offen lds")

    def wo_addr(self, X, base):
        for t in range(5):
            X(base + t, f"((((v0 + {64 * t}) * 6554) >> 16) * 1120) + (v0 + {64 * t}) * 16")

    def wo_group(self, base, gadd, lds=L_WO):
        for x in self.wo_list(base, gadd, lds): self.A(x)

    def wo_list(self, base, gadd, lds=L_WO):
        pre = (f"""s_add_u32 s64, {WAVE}, {gadd}
        s_mul_i32 s65, s64, 5120
        s_mul_i32 s64, s64, 40960
        s_lshr_b32 s66, {IDX}, 2
        s_mul_i32 s66, s66, 160
        s_add_u32 s64, s64, s66
        """)
        return [(pre if t == 0 else "") + f"s_add_u32 m0, s65, {lds + 1024 * t}\nbuffer_load_dwordx4 {v(base + t)}, {SO}, s64 offen lds" for t in range(5)]

    def pf_kv(self, su, vx, vw, vd):
        A = self.A
        lw, le = A.label("pfw"), A.label("pfe")
        A(f"""s_mul_i32 s64, {su}, 3641
        s_lshr_b32 s64, s64, 16
        s_mul_i32 s65, s64, 18
        s_sub_u32 s65, {su}, s65
        s_cmp_ge_u32 s65, 8
        s_cbranch_scc1 {lw}
        s_lshr_b32 s66, {XCD}, 1
        s_lshl_b32 s66, s66, 3
        s_add_u32 s65, s65, s66
        s_mul_i32 s65, s65, {64 * 1280}
        s_lshl_b32 s64, s64, 7
        s_add_u32 s64, s64, s65
        buffer_load_dword {vd}, {vx}, {SX}, s64 offen
        s_branch {le}
        {lw}:
        s_mul_i32 s64, s64, {64 * 3840}
        s_cmp_ge_u32 s65, 13
        s_cselect_b32 s66, 7, 2
        s_add_u32 s65, s65, s66
        s_and_b32 s66, {XCD}, 1
        s_mul_i32 s66, s66, 5
        s_add_u32 s65, s65, s66
        s_lshl_b32 s65, s65, 7
        s_add_u32 s64, s64, s65
        buffer_load_dword {vd}, {vw}, {SW}, s64 offen
        {le}:""")

    def pf_wq(self, su, vw, vd):
        self.A(f"""s_mul_i32 s64, {su}, 13108
        s_lshr_b32 s64, s64, 16
        s_mul_i32 s65, s64, 5
        s_sub_u32 s65, {su}, s65
        s_mul_i32 s64, s64, {64 * 3840}
        s_and_b32 s66, {XCD}, 1
        s_mul_i32 s66, s66, 5
        s_add_u32 s65, s65, s66
        s_lshl_b32 s65, s65, 7
        s_add_u32 s64, s64, s65
        buffer_load_dword {vd}, {vw}, {SW}, s64 offen""")

    def pf_wo(self, su, vx, vd):
        self.A(f"""s_mul_i32 s64, {su}, 6554
        s_lshr_b32 s64, s64, 16
        s_mul_i32 s64, s64, {128 - 819200}
        s_mul_i32 s65, {su}, 81920
        s_add_u32 s64, s64, s65
        buffer_load_dword {vd}, {vx}, {SO}, s64 offen""")

    def phi(self, regs, tmp, vne):
        A = self.A
        n = len(tmp)
        for i in range(0, len(regs), n):
            g = list(zip(regs[i:i + n], tmp))
            for r, t in g: A(f"v_fma_f32 v{t}, v{r}, s10, {vne}")
            for r, t in g: A(f"v_exp_f32_e64 v{t}, v{t} clamp\nv_max_f32 v{r}, s11, v{r}")
            for r, t in g: A(f"v_add_f32 v{r}, v{r}, v{t}")

    def cvt(self, d, a, b):
        self.A(f"v_cvt_pk_bf16_f32 v{d}, v{a}, v{b}")


def interleave(A, main, fill, per=1, start=0):
    fill = list(fill)
    for i, m in enumerate(main):
        A(m)
        if i >= start:
            for _ in range(per):
                if fill: A(fill.pop(0))
    for f in fill: A(f)
```

```python
from k_common import *

L_RAW = L_WO
L_SCR = L_WO + 32768
T_C2, T_C3 = 1184, 1568
BANDS = ((3, 5, 31), (6, 10, 31), (11, 13, 31), (14, 18, 39), (5, 11, 31), (12, 20, 39), (3, 4, 31))


def conv(C):
    A, R = C.A, "cv"
    VZ, VONE, VH0 = "v1", "v2", "v3"
    X = LaneExpr(A, [f"v{i}" for i in range(236, 256)])
    A(f"""L_conv:
    s_sub_u32 s63, {IDX}, 16
    s_lshl_b32 s64, {XCD}, 3
    s_lshl_b32 s65, {XCD}, 1
    s_add_u32 s65, s65, 56
    s_cmp_lt_u32 s63, 8
    s_cselect_b32 {RB}, s64, s65
    s_add_u32 {RB}, {RB}, s63
    s_lshl_b32 s68, {RB}, 3
    s_add_u32 s68, s68, {WAVE}
    v_mov_b32 {VZ}, 0
    v_mov_b32 {VONE}, 1""")
    X(4, "v0 * 4 + s68 * 256"); X(5, "s68 * 2")
    X(16, "v0 * 1280"); X(17, "v0 * 3840")
    C.srds()
    A("""global_load_dword v10, v4, s[12:13]
    global_load_dword v11, v4, s[14:15]
    global_load_ushort v14, v5, s[20:21]
    global_load_dword v12, v4, s[16:17]
    global_load_dword v13, v4, s[18:19]
    global_load_ushort v15, v5, s[22:23]""")
    pf = C.plan("cv")
    A(f"s_mul_i32 s67, {WAVE}, 10\ns_add_u32 s67, s67, {IDX}\ns_sub_u32 s67, s67, 16")
    early = C.o.get("cvearly", 0)
    if early:
        for u in pf: C.pf_unit("s67", u, 80, "v16", "v17", None, "v19")
    C.stamp(R, 1, "iss")
    X(7, "v0 & 15", "n"); X(8, "v0 >> 4", "g")
    SW_, SR_, GV, UB = 4, 5, 6, 9
    X(GV, f"v16 + {WAVE} * {256 * 1280} + {RB} * 16")
    X(SW_, f"v0 * 8 + {WAVE} * 8704 + {L_SCR}")
    X(SR_, f"n * 544 + g * 16 + {WAVE} * 8704 + {L_SCR}")
    A(f"s_mul_i32 s69, {WAVE}, {TSTR}\ns_add_u32 s69, s69, {L_T}\ns_mul_i32 s3, {WAVE}, {USTR}")
    X(UB, "n * 32 + g * 16 + s3 + 32")
    for i in range(4): A(f"v_mov_b32 v{28 + i}, 0")
    X(26, "v0 * 8 + s3"); X(27, "v0 * 16 + s69")
    A(f"ds_write_b64 v26, v[28:29]\nds_write_b128 v27, v[28:31]\nds_write_b128 v27, v[28:31] offset:{TSTR - 1024}")
    OA = 20
    C.wo_addr(X, OA)
    AD, SL, A2, A3, T0, T1, T2, TX = 25, 26, 27, 28, 29, 30, 31, 32
    X(233, "15 + n - g * 8", "lm")
    X(SL, f"{0x03020504} if (lm & 1) == 1 else {0x01000302}")
    X(AD, "((lm >> 1) - 3) * 4 + s69 + 32")
    X(A2, f"(n - g * 4 - 3) * 8 + s69 + {T_C2}")
    X(A3, f"(n - g * 4 - 3) * 4 + s69 + {T_C3}")
    X(T0, "((g >> 1) * 128 + n * 8 + (g & 1) * 4) * 2 + s69 + 32")
    X(T1, f"((g * 256 + n * 16 + {32 + 2 * 258}) if g < 2 else (g * 128 + n * 4 + {T_C2 - 256})) + s69")
    X(T2, f"g * 128 + n * 2 + s69 + {T_C3}")
    X(TX, "s69")
    BND = 36
    X(232, "15 - n + g * 8")
    A("v_min_u32 v232, 31, v232\ns_mov_b32 s64, 0x3f80")
    for bi, (lo, hi, q) in enumerate(BANDS):
        cst = sum(1 << (q - d) for d in range(lo, hi + 1))
        A(f"""s_mov_b32 s63, {cst}
        v_lshrrev_b32_e64 v230, v232, s63
        v_and_b32 v231, 0xaa, v230
        v_and_b32 v230, 0x55, v230
        v_lshl_or_b32 v230, v231, 15, v230""")
        for j in range(4):
            d = BND + 4 * bi + j
            if j: A(f"v_lshrrev_b32 v{d}, {2 * j}, v230")
            A(f"v_and_b32 v{d}, 0x10001, v{d if j else 230}")
            if bi < 6: A(f"v_mul_u32_u24 v{d}, s64, v{d}")
    if not early:
        for u in pf: C.pf_unit("s67", u, 80, "v16", "v17", None, "v19")
    C.stamp(R, 2, "adr")

    gk = [0]
    CA, CD, cr = 6, 12, C.o.get("cr", 4)
    A(f"s_mov_b32 s4, {WS_B}\ns_lshl_b32 {FLAGO}, {RB}, 7\ns_add_u32 {FLAGO}, {FLAGO}, {FLB}")

    def gather():
        t = gk[0]; gk[0] += 1
        if C.o.get("xnog"): return
        A(f"s_add_u32 s63, {IDX}, {t}\ns_and_b32 s63, s63, 3\ns_mul_i32 s64, s63, {64 * 1280}\ns_lshl_b32 s63, s63, 10\ns_add_u32 s63, s63, s66")
        C.dma(f"v{GV}", SX, "s64", "s63", L_RAW)

    A(f"s_waitcnt vmcnt({len(pf)})\ns_mov_b32 s10, {LOG2E}\ns_mov_b32 s11, 0x3e22f983\ns_lshl_b32 s66, {WAVE}, 12")
    C.stamp(R, 3, "par")
    A("""v_lshlrev_b32 v14, 16, v14
    v_mul_f32 v14, s10, v14
    v_lshlrev_b32 v70, 16, v10
    v_and_b32 v71, 0xffff0000, v10
    v_exp_f32 v14, v14
    v_mul_f32 v70, s10, v70
    v_mul_f32 v71, s10, v71
    v_exp_f32 v70, v70
    v_exp_f32 v71, v71
    v_cvt_pk_bf16_f32 v14, v14, v14
    v_lshlrev_b32 v72, 16, v11
    v_and_b32 v73, 0xffff0000, v11
    v_cvt_pk_bf16_f32 v10, v70, v71
    v_lshlrev_b32 v14, 16, v14
    v_lshlrev_b32 v70, 16, v10
    v_and_b32 v71, 0xffff0000, v10
    v_lshlrev_b32 v15, 16, v15""")
    for i in range(4): A(f"v_mul_f32 v{70 + i}, v{70 + i}, v14")
    for i in range(2): A(f"v_mul_f32 v{70 + i}, s10, v{70 + i}\nv_mul_f32 v{72 + i}, s11, v{72 + i}")
    E8, P, RA, RBb, W = 74, 78, 118, 122, 126
    RF, CF, D = 132, 164, 196

    def cexp(d, p, conj):
        fp = {1: "1.0", 8: "0x41000000", 128: "0x43000000"}[p]
        for i in range(2):
            A(f"v_mul_f32 v{230 + 2 * i}, {fp}, v{70 + i}\nv_mul_f32 v{231 + 2 * i}, {fp}, v{72 + i}")
        for i in range(2):
            A(f"v_exp_f32_e64 v{230 + 2 * i}, -v{230 + 2 * i}\nv_fract_f32 v{231 + 2 * i}, v{231 + 2 * i}")
        for i in range(2):
            A(f"v_cos_f32 v{d + 2 * i}, v{231 + 2 * i}\nv_sin_f32 v{d + 2 * i + 1}, v{231 + 2 * i}")
        for i in range(2):
            A(f"v_mul_f32 v{d + 2 * i}, v{d + 2 * i}, v{230 + 2 * i}")
            A(f"v_mul_f32_e64 v{d + 2 * i + 1}, {'-' if conj else ''}v{d + 2 * i + 1}, v{230 + 2 * i}")

    def cmul(d, a_, b_):
        for i in (0, 2): A(f"v_pk_mul_f32 {v(d + i, 2)}, {v(a_ + i, 2)}, {v(b_ + i, 2)} op_sel:[0,0] op_sel_hi:[0,1]")
        for i in (0, 2): A(f"v_pk_fma_f32 {v(d + i, 2)}, {v(a_ + i, 2)}, {v(b_ + i, 2)}, {v(d + i, 2)} op_sel:[1,1,0] op_sel_hi:[1,0,1] neg_lo:[0,1,0]")

    wk = [0]

    def put(row, z):
        w = W + 2 * (wk[0] % 3); wk[0] += 1
        C.cvt(w, z, z + 1); C.cvt(w + 1, z + 2, z + 3)
        A(f"ds_write_b64 v{SW_}, {v(w, 2)} offset:{544 * row}")

    def get(f):
        for st in range(8): A(f"ds_read_b128 {v(f + 4 * st, 4)}, v{SR_} offset:{64 * st}")

    def mm(d):
        A("s_waitcnt lgkmcnt(0)")
        for st in range(8): A(f"{MF} {v(d, 4)}, {v(CF + 4 * st, 4)}, {v(RF + 4 * st, 4)}, {v(d, 4) if st else 0}")

    cexp(E8, 8, False)
    A(f"""v_add_f32 v14, v14, v14
    v_lshlrev_b32 v{RA}, 16, v12
    v_lshlrev_b32 v{RA + 1}, 16, v13
    v_and_b32 v{RA + 2}, 0xffff0000, v12
    v_and_b32 v{RA + 3}, 0xffff0000, v13""")
    for i in range(4): A(f"v_mul_f32 v{RA + i}, v{RA + i}, v14")
    gp = C.o.get("gp", 0)
    cur, nxt = RA, RBb
    for j in range(16):
        if j < 15: cmul(nxt, cur, E8)
        put(j, cur)
        cur, nxt = nxt, cur
        if j == 7 and gp == 0: gather()
    get(RF)
    Pp = lambda t: P + 4 * t
    A(f"v_mov_b32 v{Pp(8)}, v{E8}\nv_sub_f32 v{Pp(8) + 1}, 0, v{E8 + 1}\nv_mov_b32 v{Pp(8) + 2}, v{E8 + 2}\nv_sub_f32 v{Pp(8) + 3}, 0, v{E8 + 3}")
    cexp(Pp(1), 1, True); cexp(E8, 128, True)
    gather()
    A(f"v_mov_b32 v{P}, 1.0\nv_mov_b32 v{P + 1}, 0\nv_mov_b32 v{P + 2}, 1.0\nv_mov_b32 v{P + 3}, 0")
    put(0, Pp(0)); put(1, Pp(1))
    for t in range(2, 8):
        cmul(Pp(t), Pp(t >> 1), Pp(t - (t >> 1)))
        put(t, Pp(t))
    put(8, E8)
    ch = {}
    free = [RA, RBb, Pp(0)]

    def step(t, src=None):
        src = src or ch.get(t, Pp(t))
        d = free.pop(0)
        cmul(d, src, E8)
        if src != E8: free.append(src)
        ch[t] = d
        return d

    for t in range(1, 8):
        put(8 + t, step(t))
        if t & 1: free.append(ch[t])
    get(CF)
    gather()
    step(8)
    seq = [2, 4, 6, 8, 2, 4, 6, 8] + [4, 8] * 4
    z = step(seq[0])
    mm(D)
    for row in range(16):
        zn = step(seq[row + 1]) if row < 15 else step(8)
        put(row, z); z = zn
        if row == 8: gather()
    get(CF)
    A(f"s_mov_b64 exec, 1\nv_add_f32 v{D}, v{D}, v15\ns_mov_b64 exec, -1")
    C.cvt(D, D, D + 1); C.cvt(D + 1, D + 2, D + 3)
    A(f"ds_write_b64 v{T0}, {v(D, 2)}")
    mm(D + 4)
    for row in range(9):
        zn = step(8) if row < 7 else step(0, E8) if row == 7 else None
        put(row, z); z = zn
    while gk[0] < 4: gather()
    C.h0_load(VH0, "v35")
    get(CF)
    C.cvt(D, D + 4, D + 5); C.cvt(D + 1, D + 5, D + 5); C.cvt(D + 2, D + 6, D + 7); C.cvt(D + 3, D + 7, D + 7)
    A(f"""v_and_b32 v{D + 4}, 0xffff, v{D + 3}
    s_mov_b32 exec_hi, 0
    ds_write2_b32 v{T1}, v{D}, v{D + 1} offset1:1
    ds_write2_b32 v{T1}, v{D + 2}, v{D + 3} offset0:2 offset1:3
    s_mov_b32 exec_lo, 0x80000000
    ds_write_b32 v{T1}, v{D + 4} offset:16
    s_mov_b32 exec_lo, 0
    s_mov_b32 exec_hi, -1
    ds_write2_b32 v{T1}, v{D}, v{D + 2} offset1:16
    s_mov_b32 exec_lo, -1""")
    mm(D + 8)
    X(74, f"(g * 16 + (n & 2) * 4 + (n >> 2)) * 16 + (n & 1) * 8 + {WAVE} * 4096 + {L_RAW}")
    X(75, f"(n & 7) * {USTR} + (256 + {WAVE} * 256 + g * 16 + (n >> 3) * 8) * 2")
    C.cvt(D + 4, D + 8, D + 8); C.cvt(D + 8, D + 8, D + 9); C.cvt(D + 9, D + 10, D + 11)
    A("s_mov_b32 exec_hi, 0")
    for i in range(4):
        A(f"ds_write_b16{'_d16_hi' if i & 1 else ''} v{T2}, v{D + 8 + (i >> 1)} offset:{32 * i}")
    A(f"s_mov_b32 exec_lo, 0\ns_mov_b32 exec_hi, 1\nds_write_b32 v{TX}, v{D + 4} offset:{32 + 512}\ns_mov_b64 exec, -1")
    C.stamp(R, 4, "tab")
    ACC, RW, AF, BF, DF, BX = 64, 96, 108, 124, 188, 12
    TF = BND

    def areads(c, k):
        r = RW + 6 * k
        return [f"ds_read2_b32 {v(r, 2)}, v{AD} offset0:{16 * c} offset1:{16 * c + 1}" if c < 16 else f"ds_read2_b32 {v(r, 2)}, v33 offset1:1",
                f"ds_read2_b32 {v(r + 2, 2)}, v{AD} offset0:{16 * c + 2} offset1:{16 * c + 3}" if c < 16 else f"ds_read2_b32 {v(r + 2, 2)}, v33 offset0:2 offset1:3",
                f"ds_read_b32 v{r + 4}, v{AD} offset:{64 * c + 16}"]

    def aperm(d, k):
        r = RW + 6 * k
        return [f"v_perm_b32 v{d + t}, v{r + 4 - t}, v{r + 3 - t}, v{SL}" for t in range(4)]

    A(f"v_add_u32 v33, 1024, v{AD}\nds_read_u16 v34, v{TX} offset:{T_C2 + 254}")
    for x in areads(16, 0) + areads(0, 1): A(x)
    A("s_waitcnt vmcnt(0)")
    C.stamp(R, 5, "x")
    C.h0_check(VH0, "v35")
    for u in C.plan("c2"): C.pf_unit("s67", u, 80, "v16", "v17", None, "v35")
    A(f"v_mov_b32 v4, {LDS_BYTES - 4}\nds_write_b32 v4, {VZ}")
    for t in range(4):
        for hh in range(2): A(f"ds_read_b64_tr_b16 {v(80 + 4 * t + 2 * hh, 2)}, v74 offset:{1024 * t + 64 * hh}")
    A("s_waitcnt lgkmcnt(8)")
    for x in aperm(252, 0) + aperm(AF, 1): A(x)
    for j in range(4): A(f"v_mul_u32_u24 v{BND + 24 + j}, v34, v{BND + 24 + j}")
    for x in areads(8, 0): A(x)
    for t in range(4): A(f"s_waitcnt lgkmcnt({9 - t})\nds_write_b128 v75, {v(80 + 4 * t, 4)} offset:{128 * t}")
    A("s_waitcnt lgkmcnt(0)")
    for x in aperm(AF + 4, 0): A(x)
    A("s_barrier")
    C.stamp(R, 6, "C1")

    bread = lambda r, e, o=0: f"ds_read_b128 {v(BF + 32 * (r & 1) + 4 * e, 4)}, v{UB} offset:{64 * (8 * e - r) + 448 + o}"
    acc = lambda g: v(ACC + 4 * g, 4)
    for e in range(8): A(bread(0, e))
    for e in range(6): A(bread(1, e, 48))
    wo = [x for g in range(2) for x in C.wo_list(OA, 8 * g)]
    B0 = lambda e: v(BF + 4 * e, 4)
    B1 = lambda e: v(BF + 32 + 4 * e, 4)
    for e in range(8):
        A(f"s_waitcnt lgkmcnt({13 - e})\n{MF} {acc(e)}, {v(AF, 4)}, {B0(e)}, 0")
    A("s_waitcnt lgkmcnt(0)")
    rest = [f"{MF} {acc(g)}, {v(fa, 4)}, {B0(g - a_)}, {acc(g)}" for a_, fa in ((1, AF + 4), (2, 252), (4, BND + 24)) for g in range(a_, 8)]
    band = lambda bi: v(BND + 4 * bi, 4)
    TMP = (RW, RW + 4, BX, BX + 4)
    for e in range(6):
        for t in range(4): A(f"{MF} {v(TMP[t], 4)}, {(B1 if t == 3 else B0)(e)}, {band(t)}, 0")
        cv = [f"v_cvt_pk_bf16_f32 v{DF + 8 * e + 2 * i + hh}, v{TMP[2 * hh] + i}, v{TMP[2 * hh + 1] + i}" for hh in range(2) for i in range(4)]
        if e < 4:
            for t in range(2): A(f"{MF} {v(AF + 8 + 4 * t, 4)}, {(B1 if t else B0)(e)}, {band(4 + t)}, 0")
            cv += [f"v_cvt_pk_bf16_f32 v{DF + 48 + 4 * e + i}, v{AF + 8 + i}, v{AF + 12 + i}" for i in range(4)]
        m = [rest.pop(0) for _ in range(3 if e < 5 else 2)]
        nb = [bread(1, e)] + ([bread(1, 6), bread(1, 7)] if e == 5 else [])
        interleave(A, m, cv + nb, per=4 if e < 4 else 3)
    for x in areads(1, 0) + areads(9, 1): A(x)
    X = LaneExpr(A, ["v16", "v17", "v18", "v19"], dict(n="v7", g="v8"))
    X(CA, f"v0 * 16 + {RB} * 32768 + {WAVE} * 4096")
    for i in range(4): A(f"v_mov_b32 v{CD + i}, -1")
    wo = [f"buffer_store_dwordx4 {v(CD, 4)}, v{CA}, {SWS}, s4 offen offset:{1024 * i} sc1" for i in range(4)] + wo
    per = 3
    far = [(2, dl, h) for dl in range(3) for h in range(2)] + [(3, dl, 0) for dl in range(4)]
    sched = {1: [0], 2: [1], 3: [2, 9], 4: [3], 5: [4, 8], 6: [5], 7: [6, 7]}

    def treads(r):
        l = []
        for k, fi in enumerate(sched.get(r, [])):
            cl, dl, h = far[fi]
            f = TF + 8 * (r & 1) + 4 * k
            if cl == 2:
                l += [f"ds_read_b64 {v(f + 2 * i, 2)}, v{A2} offset:{8 * (16 * dl + 3 - 2 * h - i)}" for i in range(2)]
            else:
                l += [f"ds_read2_b32 {v(f + 2 * i, 2)}, v{A3} offset0:{16 * dl + 3 - 2 * i} offset1:{16 * dl + 2 - 2 * i}" for i in range(2)]
        return l

    def tmm(r):
        l = []
        for k, fi in enumerate(sched[r]):
            cl, dl, h = far[fi]
            f = v(TF + 8 * (r & 1) + 4 * k, 4)
            g0 = dl + (2 if cl == 2 else 4)
            for g in range(g0, 8):
                d = DF + 8 * (g - g0) + 4 * h if cl == 2 else DF + 48 + 4 * (g - g0)
                l.append(f"{MF} {acc(g)}, {v(d, 4)}, {f}, {acc(g)}")
        return l

    for x in treads(1): A(x)
    A("s_waitcnt lgkmcnt(0)")
    for x in aperm(AF + 8, 0) + aperm(AF + 12, 1): A(x)
    for r in range(1, 8):
        af, b = AF + 8 * (r & 1), BF + 32 * (r & 1)
        m = [f"{MF} {acc(g)}, {v(af + 4 * a_, 4)}, {v(b + 4 * (g - a_), 4)}, {acc(g)}" for a_ in range(2) for g in range(a_, 8)]
        if r < 7:
            rd = areads(r + 1, 0) + areads(r + 9, 1) + treads(r + 1) + [bread(r + 1, e) for e in range(8)]
            interleave(A, m[:9], rd, per=2)
            interleave(A, m[9:], [wo.pop(0) for _ in range(per) if wo], per=1, start=1)
            A("s_waitcnt lgkmcnt(0)")
            nf = AF + 8 * ((r + 1) & 1)
            interleave(A, tmm(r), aperm(nf, 0) + aperm(nf + 4, 1), per=2)
        else:
            for x in m + tmm(r): A(x)
        if r == cr:
            A(f"s_waitcnt vmcnt({10 - len(wo)})\ns_mov_b64 exec, 1\nds_add_rtn_u32 v5, v4, {VONE}\ns_mov_b64 exec, -1")
        if r == cr + 1:
            A("v_readfirstlane_b32 s7, v5")
            C.only("s7", 7, lambda: C.set_flag(VZ, VONE, FLAGO))
        if r == 5:
            A(f"s_cmp_ge_u32 {WAVE}, 4\ns_cbranch_scc1 L_cv_nowo")
            C.wo_group(OA, 16)
            A("L_cv_nowo:")
    C.stamp(R, 7, "toep")
    X(4, "n * 32 + g * 8 + s3 + 512")
    X(5, f"(n >> 2) * {USTR} + (256 + {WAVE} * 256 + g * 16 + (n & 3) * 4) * 2")
    for g in range(8):
        d = ACC + 4 * g
        C.cvt(d, d, d + 1); C.cvt(d + 1, d + 2, d + 3)
        A(f"ds_write_b64 v4, {v(d, 2)} offset:{512 * g}")
    A("s_waitcnt vmcnt(0)")
    A("s_waitcnt lgkmcnt(0)\ns_barrier")
    C.stamp(R, 8, "C2")
    for t in range(4):
        for hh in range(2): A(f"ds_read_b64_tr_b16 {v(AF + 4 * t + 2 * hh, 2)}, v5 offset:{128 * t + 4 * USTR * hh}")
    for t in range(4):
        A(f"s_waitcnt lgkmcnt({6 - 2 * t})\nbuffer_store_dwordx4 {v(AF + 4 * t, 4)}, v6, {SWS}, s4 offen offset:{1024 * t} sc1")
    C.stamp(R, 9, "pub")
    A(f"s_cmp_ge_u32 {WAVE}, 4\ns_cbranch_scc1 L_end")
    A(f"s_mov_b32 s3, 0\ns_mov_b32 {LID}, {L_WO}\ns_branch L_outproj")
```

```python
from k_common import *


def spare(C):
    A, R = C.A, "sp"
    VZ, VONE, VH0, VD = "v1", "v2", "v3", "v4"
    X = LaneExpr(A, [f"v{i}" for i in range(236, 256)])
    A(f"""L_spare:
    s_sub_u32 s68, {IDX}, 26
    s_lshl_b32 s64, {XCD}, 2
    s_lshl_b32 s65, {XCD}, 1
    s_add_u32 s65, s65, 28
    s_cmp_lt_u32 s68, 4
    s_cselect_b32 {RB}, s64, s65
    s_add_u32 {RB}, {RB}, s68
    s_mul_i32 s69, {WAVE}, 6
    s_add_u32 s69, s69, s68
    v_mov_b32 {VZ}, 0
    v_mov_b32 {VONE}, 1""")
    X(5, "v0 * 1280"); X(6, "v0 * 3840")
    C.srds()
    OA, CD = 8, 100

    def gate():
        X(14, "(v0 & 7) * 16")
        X(15, f"{RB} * 64 + {WAVE} * 8 + (v0 >> 3)")
        X(13, "v15 * 1280 + v14")
        X(15, "v15 * 4")
        for i in range(10):
            A(f"buffer_load_dwordx4 {v(20 + 4 * i, 4)}, v13, {SX}, 0 offen offset:{128 * i}")
            A(f"global_load_dwordx4 {v(60 + 4 * i, 4)}, v14, s[24:25] offset:{128 * i}")
        A("v_mov_b32 v16, 0\nv_mov_b32 v17, 0")
        for i in range(10):
            A(f"s_waitcnt vmcnt({18 - 2 * i})")
            for j in range(4): A(f"v_dot2c_f32_bf16 v{16 + (j & 1)}, v{20 + 4 * i + j}, v{60 + 4 * i + j}")
        A(f"""s_nop 3
        v_add_f32 v16, v16, v17
        v_add_f32_dpp v16, v16, v16 quad_perm:[1,0,3,2] row_mask:0xf bank_mask:0xf
        v_add_f32_dpp v16, v16, v16 quad_perm:[2,3,0,1] row_mask:0xf bank_mask:0xf
        v_add_f32_dpp v16, v16, v16 row_half_mirror row_mask:0xf bank_mask:0xf
        v_mul_f32 v16, {LOG2E}, v16
        v_exp_f32_e64 v16, -v16
        v_add_f32 v16, 1.0, v16
        v_rcp_f32 v16, v16
        s_mov_b32 s64, {WS_G}
        s_mov_b32 exec_lo, 0x01010101
        s_mov_b32 exec_hi, 0x01010101
        buffer_store_dword v16, v15, {SWS}, s64 offen sc1
        s_mov_b64 exec, -1""")

    A("s_cmp_lt_u32 s2, 254\ns_cbranch_scc1 L_sp_noclr\ns_and_b32 s64, s2, 1")
    X(104, f"v0 * 16 + (s64 * 8 + {WAVE}) * 4096 + {WS_G}")
    for i in range(4): A(f"v_mov_b32 v{CD + i}, -1")
    for i in range(4): A(f"buffer_store_dwordx4 {v(CD, 4)}, v104, {SWS}, 0 offen offset:{1024 * i} sc1")
    A("s_lshl_b32 s64, s64, 7\ns_waitcnt vmcnt(0)\ns_barrier")
    C.only(WAVE, 0, lambda: C.set_flag(VZ, VONE, "s64", SDBG))
    A("L_sp_noclr:")
    for u in C.plan("sp"):
        kind, l = u[0][0], A.label("sp")
        if kind == "g":
            C.stamp(R, 1, "pf")
            C.h0_load(VH0, "v7")
            A("s_waitcnt vmcnt(0)")
            C.h0_check(VH0, "v7")
            A(f"s_barrier\ns_cmp_ge_u32 s68, 4\ns_cbranch_scc1 {l}")
            gate()
            C.stamp(R, 2, "g")
        elif kind == "w":
            C.wo_addr(X, OA)
            for g in range(2): C.wo_group(OA, 8 * g)
            A(f"s_cmp_ge_u32 {WAVE}, 4\ns_cbranch_scc1 {l}")
            C.wo_group(OA, 16)
        else:
            C.pf_unit("s69", u, 48, "v5", "v6", None, VD)
        A(f"{l}:")
    A("s_waitcnt vmcnt(0)\ns_barrier")
    C.stamp(R, 3, "wo")
    A(f"s_cmp_ge_u32 {WAVE}, 4\ns_cbranch_scc1 L_end")
    A(f"s_mov_b32 s3, 0\ns_mov_b32 {LID}, {L_WO}")


def outproj(C):
    A, R = C.A, "op"
    RING = 6
    AM, AT, PF, L16, L8, BA, BA4, GA, OA, OA4, VT = 2, 4, 6, 7, 8, 9, 10, 11, 12, 13, 14
    BD, GV, ACC, BF, AF = 16, 15, 28, 48, 128
    X = LaneExpr(A, [f"v{i}" for i in range(48, 64)])
    A("L_outproj:")
    C.stamp(R, 10, "op")
    X(26, "v0 & 15", "n"); X(27, "v0 >> 4", "g")
    X(AM, f"(g * 4 + (n >> 2)) * 160 + (n & 3) * 8 + {LID}")
    X(AT, f"v{AM} + g * 2560 + 2560")
    X(AM + 1, f"v{AM} + 51200"); X(AT + 1, f"v{AT} + 51200")

    order = [4 * p + j if j < 4 else 16 + p for p in range(4) for j in range(5)]

    def reads(k):
        f, r, st = AF + 20 * (k % RING), [], order[k]
        for t in range(5):
            for hf in range(2):
                a_, o = (AM, (40 * st + 20 * hf) * 160) if st < 16 else (AT, (2 * (st - 16) + hf) * 12800)
                r.append(f"ds_read_b64_tr_b16 {v(f + 4 * t + 2 * hf, 2)}, v{a_ + o // 51200} offset:{o % 51200 + 32 * t}")
        return r

    for st in range(RING):
        for x in reads(st): A(x)
    A(f"""s_and_b32 s64, {IDX}, 3
    s_lshl_b32 s65, {XCD}, 2
    s_add_u32 s64, s64, s65
    s_lshl_b32 s67, s64, 2
    s_add_u32 s67, s67, {WAVE}
    s_lshr_b32 s68, {IDX}, 2
    s_mul_i32 s69, s68, 10""")
    X.env.update(rblk="s64", rt="s67", cb="s68", cg="s69")
    X(PF, f"(((rblk >> 1) * 1024 + {FLO}) if v0 < 8 else (cg * 128 + {FLB - 1024})) + v0 * 128")
    C.probe(f"v{GV}", f"v{PF}", 18)
    X(L16, "v0 * 16"); X(L8, "v0 * 8")
    X(1, "rt * 16 + n", "row")
    X(VT, "(g & 1) * 2 + (g >> 1)")
    X(BA, f"(cg + v{VT}) * 32768 + row * 16 + {WS_B}")
    X(BA4, f"(cg + 8 + (g >> 1)) * 32768 + row * 16 + (g & 1) * 8 + {WS_B}")
    X(GA, f"row * 4 + {WS_G}")
    X(OA4, "row * 1280 + cb * 160")
    X(OA, f"v{OA4} + v{VT} * 16"); X(OA4, f"v{OA4} + g * 8 + 128")
    A(f"s_mul_i32 s4, s67, 20480\ns_add_u32 s4, s4, {WS_O}")
    for i in range(4): A(f"s_add_u32 s{5 + i}, s4, {4096 * (i + 1)}")
    A("s_mov_b32 s9, 131072\ns_mov_b32 s63, 0")
    grp = [[(BF + 16 * p + 4 * j + 3, f"buffer_load_dwordx4 {v(BF + 16 * p + 4 * j, 4)}, v{L16}, {SWS}, s{4 + p} offen offset:{1024 * j} sc1") for j in range(4)] +
           [(BF + 64 + 4 * p + 2 * j + 1, f"buffer_load_dwordx2 {v(BF + 64 + 4 * p + 2 * j, 2)}, v{L8}, {SWS}, s8 offen offset:{1024 * p + 512 * j} sc1") for j in range(2)] for p in range(4)]
    grp.append([(BD + 3, f"buffer_load_dwordx4 {v(BD, 4)}, v{BA}, {SWS}, 0 offen sc1"),
                (BD + 7, f"buffer_load_dwordx4 {v(BD + 4, 4)}, v{BA}, {SWS}, s9 offen sc1"),
                (BD + 9, f"buffer_load_dwordx2 {v(BD + 8, 2)}, v{BA4}, {SWS}, 0 offen sc1"),
                (GV, f"buffer_load_dword v{GV}, v{GA}, {SWS}, 0 offen sc1")])
    A("s_waitcnt vmcnt(0)\ns_cmp_eq_u32 s3, 0\ns_cbranch_scc1 L_op_now\ns_barrier\nL_op_now:")
    C.settle(f"v{GV}", f"v{PF}", 18, sleep=C.o.get("sl3", 2))
    C.stamp(R, 11, "gate")
    A("s_mov_b32 s63, 0")
    for g_ in grp:
        for _, ld in g_: A(ld)

    def check(p):
        A(f"L_op_chk{p}:\ns_waitcnt vmcnt({sum(len(g_) for g_ in grp[p + 1:])})")
        for x in C.tags([t_ for t_, _ in grp[p]], f"v{VT}"): A(x)
        A(f"s_cbranch_vccnz L_op_slow{p}\nL_op_ok{p}:")

    for k, st in enumerate(order):
        if k % 5 == 0: check(k // 5)
        if k == 0: C.stamp(R, 12, "F2")
        A(f"s_waitcnt lgkmcnt({0 if k == 0 or k == 19 else 10})")
        f = AF + 20 * (k % RING)
        m = [f"{MF} {v(ACC + 4 * t, 4)}, {v(f + 4 * t, 4)}, {v(BF + 4 * st, 4)}, {v(ACC + 4 * t, 4) if k else 0}" for t in range(5)]
        nx = k - 1 + RING
        interleave(A, m, reads(nx) if 0 < k and nx < 20 else [], per=2)
    C.stamp(R, 13, "mm")
    check(4)
    U = BF
    for j in range(10): A(f"v_lshlrev_b32 v{U + 2 * j}, 16, v{BD + j}\nv_and_b32 v{U + 2 * j + 1}, 0xffff0000, v{BD + j}")
    for p in range(2):
        for i in range(4): A(f"v_permlane16_swap_b32 v{ACC + 8 * p + i}, v{ACC + 8 * p + 4 + i}")
    for i in range(20): A(f"v_sub_f32 v{ACC + i}, v{ACC + i}, v{U + i}")
    for i in range(20): A(f"v_fma_f32 v{ACC + i}, v{ACC + i}, v{GV}, v{U + i}")
    for j in range(10): C.cvt(BD + j, ACC + 2 * j, ACC + 2 * j + 1)
    A(f"""buffer_store_dwordx4 {v(BD, 4)}, v{OA}, {SOUT}, 0 offen
    buffer_store_dwordx4 {v(BD + 4, 4)}, v{OA}, {SOUT}, 0 offen offset:64
    buffer_store_dwordx2 {v(BD + 8, 2)}, v{OA4}, {SOUT}, 0 offen""")
    C.stamp(R, 14, "st")
    A("s_branch L_end")
    for p in range(5):
        A(f"L_op_slow{p}:\ns_waitcnt vmcnt(0)\ns_add_u32 s63, s63, 1\ns_cmp_ge_u32 s63, {SPIN}\ns_cbranch_scc1 L_op_ok{p}")
        if C.o.get("sl2", 0): A(f"s_sleep {C.o['sl2']}")
        C.reload([x for g_ in grp[p:] for x in g_])
        A(f"s_branch L_op_chk{p}")
```
